```python
import torch

def _softmax(x, axis=-1):
    return torch.softmax(x, dim=axis)
def _gelu(x):
    return torch.nn.functional.gelu(x, approximate="tanh")
def _silu(x):
    return torch.nn.functional.silu(x)
def _sigmoid(x):
    return torch.sigmoid(x)
def _layernorm(x, axis=-1, eps=1e-5):
    m = x.mean(dim=axis, keepdim=True)
    v = x.var(dim=axis, keepdim=True, unbiased=False)
    return (x - m) / torch.sqrt(v + eps)
def _scatter_add(tgt, idx, src, axis=0):
    return tgt.clone().index_add_(axis, idx, src)
def _segment_sum(src, seg, n):
    out = torch.zeros((n,) + src.shape[1:], dtype=src.dtype)
    return out.index_add_(0, seg, src)
def _pad(x, pw):
    flat = tuple(v for pair in reversed(pw) for v in pair)
    return torch.nn.functional.pad(x, flat)

kernel_name = 'sequential_preLN__sliding_block_cached__glu_gated_glu__decode'

def setup_inputs():

    _w = (lambda a: (lambda t: t.to(torch.bfloat16) if t.is_floating_point() else t)(torch.as_tensor(a)))
    def _A_setup():
        B, Sq, D = 2, 1, 512
        Hq, Hkv, Sk, Dh = 32, 8, 32768, 128
        assert Hq % Hkv == 0, (Hq, Hkv)
        return {
            "x": _w((lambda *s: torch.randn(*s, dtype=torch.bfloat16) * 0.05)(B, Sq, D)),
            "k_cache": _w((lambda *s: torch.randn(*s, dtype=torch.bfloat16) * 3.2)(B, Hkv, Sk, Dh)),
            "v_cache": _w((lambda *s: torch.randn(*s, dtype=torch.bfloat16) * 0.4)(B, Hkv, Sk, Dh)),
            "wq": _w((lambda *s: torch.randn(*s, dtype=torch.bfloat16) * 3.2)(D, Hq * Dh) * (D ** -0.5)),
            "wo": _w((lambda *s: torch.randn(*s, dtype=torch.bfloat16) * 0.4)(Hq * Dh, D) * ((Hq * Dh) ** -0.5)),
        }
    _A_in = _A_setup()

    def _B_setup():
        B, S, D, F = 2, 1, 512, 1792
        return {
            "x": _w((lambda *s: torch.randn(*s, dtype=torch.bfloat16) * 0.05)(B, S, D)),
            "w_gate": _w((lambda *s: torch.randn(*s, dtype=torch.bfloat16) * 0.1)(D, F)),
            "w_up": _w((lambda *s: torch.randn(*s, dtype=torch.bfloat16) * 0.05)(D, F)),
            "w_down": _w((lambda *s: torch.randn(*s, dtype=torch.bfloat16) * 0.05)(F, D)),
        }
    _B_in = _B_setup()

    return {
        "A_x": _A_in["x"],
        "A_k_cache": _A_in["k_cache"],
        "A_v_cache": _A_in["v_cache"],
        "A_wq": _A_in["wq"],
        "A_wo": _A_in["wo"],
        "B_x": _B_in["x"],
        "B_w_gate": _B_in["w_gate"],
        "B_w_up": _B_in["w_up"],
        "B_w_down": _B_in["w_down"],
    }

def reference(A_x, A_k_cache, A_v_cache, A_wq, A_wo, B_x, B_w_gate, B_w_up, B_w_down):
    def _A_ref(x, k_cache, v_cache, wq, wo):
        B, Sq, D = x.shape
        Hq, Dh = 32, 128
        Hkv, Sk = k_cache.shape[1], k_cache.shape[2]
        W = min(4096, max(256, Sk // 4))
        rep = Hq // Hkv
        q = (lambda x, *d: x.permute(*d))((x @ wq).reshape(B, Sq, Hq, Dh), 0, 2, 1, 3)
        k = (lambda x, n, axis: torch.repeat_interleave(x, n, dim=axis))(k_cache[:, :, Sk - W:, :], rep, axis=1)
        v = (lambda x, n, axis: torch.repeat_interleave(x, n, dim=axis))(v_cache[:, :, Sk - W:, :], rep, axis=1)
        scores = torch.einsum("bhqd,bhkd->bhqk", q, k) * (Dh ** -0.5)
        p = _softmax(scores, axis=-1)
        o = torch.einsum("bhqk,bhkd->bhqd", p, v)
        return (lambda x, *d: x.permute(*d))(o, 0, 2, 1, 3).reshape(B, Sq, Hq * Dh) @ wo

    def _B_ref(x, w_gate, w_up, w_down):
        g = torch.einsum("bsd,df->bsf", x, w_gate)
        u = torch.einsum("bsd,df->bsf", x, w_up)
        h = _sigmoid(g) * u
        return torch.einsum("bsf,fd->bsd", h, w_down)

    x = A_x
    h = x + _A_ref(_layernorm(x, axis=-1), A_k_cache, A_v_cache, A_wq, A_wo)
    h2 = h + _B_ref(_layernorm(h, axis=-1), B_w_gate, B_w_up, B_w_down)
    return h2
```

```python
import sys

WS_Q = 0
WS_PO = 65536
WS_ML = WS_PO + 524288
WS_HP = 655360
WS_H = 786432
WS_HH = 790528
WS_SIZE = 1 << 20

HEADER = open('sequential_preLN__sliding_block_cached__glu_gated_glu__decode.s.ref').read().split('; Override launch')[0]

out = []
def emit(s=''):
    out.append(s)

def srd(sreg, ptr_lo, nbytes):
    emit(f'    s_mov_b32 s{sreg}, s{ptr_lo}')
    emit(f'    s_mov_b32 s{sreg+1}, s{ptr_lo+1}')
    emit(f'    s_mov_b32 s{sreg+2}, {nbytes}')
    emit(f'    s_mov_b32 s{sreg+3}, 0x00020000')

def wave_sum(v, tmp_s=40):
    for r in (8, 4, 2, 1):
        emit('    s_nop 1')
        emit(f'    v_add_f32_dpp v{v}, v{v}, v{v} row_ror:{r} row_mask:0xf bank_mask:0xf')
    emit('    s_nop 1')
    for i, l in enumerate((0, 16, 32, 48)):
        emit(f'    v_readlane_b32 s{tmp_s+i}, v{v}, {l}')
    emit('    s_nop 1')
    emit(f'    v_mov_b32 v{v}, s{tmp_s}')
    for i in range(1, 4):
        emit(f'    v_add_f32 v{v}, s{tmp_s+i}, v{v}')

def round_bf16(v, tmp):
    emit(f'    v_cvt_pk_bf16_f32 v{tmp}, v{v}, v{v}')
    emit(f'    v_lshlrev_b32 v{v}, 16, v{tmp}')

def unpack8(src, dst):
    for i in range(4):
        emit(f'    v_lshlrev_b32 v{dst+2*i}, 16, v{src+i}')
        emit(f'    v_and_b32 v{dst+2*i+1}, 0xffff0000, v{src+i}')

def kernel_begin(name):
    emit('.text')
    emit(f'.globl {name}')
    emit('.p2align 8')
    emit(f'.type {name},@function')
    emit(f'{name}:')

def kernel_desc(name, vgpr, sgpr=64):
    acc = (vgpr + 3) // 4 * 4
    emit('.section .rodata,"a"')
    emit('.p2align 6')
    emit(f'.amdhsa_kernel {name}')
    emit(f'  .amdhsa_next_free_vgpr {vgpr}')
    emit(f'  .amdhsa_next_free_sgpr {sgpr}')
    emit(f'  .amdhsa_accum_offset {acc}')
    emit('  .amdhsa_group_segment_fixed_size 0')
    emit('  .amdhsa_kernarg_size 96')
    emit('  .amdhsa_user_sgpr_count 2')
    emit('  .amdhsa_user_sgpr_kernarg_segment_ptr 1')
    emit('  .amdhsa_system_sgpr_workgroup_id_x 1')
    emit('.end_amdhsa_kernel')

def ln_rows(vx, vt, lds_off):
    emit(f'    v_add_f32 v{vt}, v{vx}, v{vx+1}')
    emit(f'    v_add_f32 v{vt+1}, v{vx+2}, v{vx+3}')
    emit(f'    v_add_f32 v{vt}, v{vt}, v{vt+1}')
    wave_sum(vt)
    emit(f'    v_lshrrev_b32 v{vt+1}, 6, v0')
    emit(f'    v_lshlrev_b32 v{vt+1}, 2, v{vt+1}')
    emit(f'    ds_write_b32 v{vt+1}, v{vt} offset:{lds_off}')
    emit('    s_waitcnt lgkmcnt(0)')
    emit('    s_barrier')
    emit(f'    v_lshrrev_b32 v{vt+2}, 7, v0')
    emit(f'    v_lshlrev_b32 v{vt+2}, 3, v{vt+2}')
    emit(f'    ds_read_b64 v[{vt+4}:{vt+5}], v{vt+2} offset:{lds_off}')
    emit('    s_waitcnt lgkmcnt(0)')
    emit(f'    v_add_f32 v{vt}, v{vt+4}, v{vt+5}')
    emit(f'    v_mul_f32 v{vt}, 1.0/512.0, v{vt}' .replace('1.0/512.0', '0x3b000000'))
    for i in range(4):
        emit(f'    v_sub_f32 v{vx+i}, v{vx+i}, v{vt}')
    emit(f'    v_mul_f32 v{vt}, v{vx}, v{vx}')
    for i in range(1, 4):
        emit(f'    v_fmac_f32 v{vt}, v{vx+i}, v{vx+i}')
    wave_sum(vt)
    emit('    s_barrier')
    emit(f'    ds_write_b32 v{vt+1}, v{vt} offset:{lds_off+16}')
    emit('    s_waitcnt lgkmcnt(0)')
    emit('    s_barrier')
    emit(f'    ds_read_b64 v[{vt+4}:{vt+5}], v{vt+2} offset:{lds_off+16}')
    emit('    s_waitcnt lgkmcnt(0)')
    emit(f'    v_add_f32 v{vt}, v{vt+4}, v{vt+5}')
    emit(f'    v_mov_b32 v{vt+3}, 0x3727c5ac')
    emit(f'    v_fmac_f32 v{vt+3}, 0x3b000000, v{vt}')
    emit(f'    v_rsq_f32 v{vt+3}, v{vt+3}')
    emit('    s_nop 0')
    for i in range(4):
        emit(f'    v_mul_f32 v{vx+i}, v{vx+i}, v{vt+3}')
        round_bf16(vx + i, vt)

launches = []

def kA():
    name = 'kA_kernel'
    launches.append((name, 128, 16384 + 4096 + 64))
    kernel_begin(name)
    emit('    s_cmp_ge_u32 s2, 128')
    emit('    s_cbranch_scc1 LA_done')
    emit('    s_load_dwordx2 s[4:5], s[0:1], 0')
    emit('    s_load_dwordx2 s[6:7], s[0:1], 24')
    emit('    s_load_dwordx2 s[20:21], s[0:1], 88')
    emit('    s_waitcnt lgkmcnt(0)')
    srd(8, 4, 2048)
    srd(12, 6, 4194304)
    srd(16, 20, WS_SIZE)
    emit('    v_lshlrev_b32 v1, 3, v0')
    emit('    buffer_load_dwordx2 v[2:3], v1, s[8:11], 0 offen')
    emit('    v_lshrrev_b32 v4, 2, v0')
    emit('    v_lshlrev_b32 v4, 13, v4')
    emit('    v_and_b32 v5, 3, v0')
    emit('    v_lshlrev_b32 v5, 4, v5')
    emit('    v_add_u32 v4, v4, v5')
    emit('    s_lshl_b32 s3, s2, 6')
    emit('    v_add_u32 v4, s3, v4')
    for i in range(8):
        emit(f'    s_mov_b32 s{24+i}, {i*64*8192}')
    for i in range(8):
        emit(f'    buffer_load_dwordx4 v[{32+4*i}:{35+4*i}], v4, s[12:15], s{24+i} offen')
    emit('    s_waitcnt vmcnt(8)')
    emit('    v_lshlrev_b32 v8, 16, v2')
    emit('    v_and_b32 v9, 0xffff0000, v2')
    emit('    v_lshlrev_b32 v10, 16, v3')
    emit('    v_and_b32 v11, 0xffff0000, v3')
    ln_rows(8, 12, 16384 + 4096)
    emit('    v_lshlrev_b32 v1, 4, v0')
    emit('    ds_write_b128 v1, v[8:11] offset:16384')
    emit('    s_waitcnt lgkmcnt(0)')
    emit('    s_barrier')
    for i in range(16):
        emit(f'    v_mov_b32 v{64+i}, 0')
    emit('    v_lshrrev_b32 v5, 2, v0')
    emit('    v_lshlrev_b32 v5, 2, v5')
    for i in range(8):
        emit(f'    ds_read_b32 v{80+2*i}, v5 offset:{16384 + 256*i}')
        emit(f'    ds_read_b32 v{81+2*i}, v5 offset:{16384 + 2048 + 256*i}')
    emit('    s_waitcnt lgkmcnt(0)')
    for i in range(8):
        emit(f'    s_waitcnt vmcnt({7-i})')
        unpack8(32 + 4*i, 16)
        for j in range(8):
            emit(f'    v_fmac_f32 v{64+j}, v{80+2*i}, v{16+j}')
            emit(f'    v_fmac_f32 v{72+j}, v{81+2*i}, v{16+j}')
    emit('    v_lshlrev_b32 v1, 6, v0')
    for q in range(4):
        emit(f'    ds_write_b128 v1, v[{64+4*q}:{67+4*q}] offset:{16*q}')
    emit('    s_waitcnt lgkmcnt(0)')
    emit('    s_barrier')
    emit('    v_cmp_gt_u32 vcc, 64, v0')
    emit('    s_and_saveexec_b64 s[36:37], vcc')
    emit('    s_cbranch_execz LA_end')
    emit('    v_and_b32 v1, 31, v0')
    emit('    v_lshrrev_b32 v2, 3, v1')
    emit('    v_lshlrev_b32 v2, 6, v2')
    emit('    v_and_b32 v3, 7, v1')
    emit('    v_lshrrev_b32 v4, 5, v0')
    emit('    v_lshl_add_u32 v3, v4, 3, v3')
    emit('    v_lshl_add_u32 v2, v3, 2, v2')
    emit('    v_mov_b32 v5, 0')
    for r0 in range(0, 64, 16):
        for r in range(16):
            emit(f'    ds_read_b32 v{16+r}, v2 offset:{(r0+r)*256}')
        emit('    s_waitcnt lgkmcnt(0)')
        for r in range(16):
            emit(f'    v_add_f32 v5, v5, v{16+r}')
    emit('    v_cvt_pk_bf16_f32 v5, v5, v5')
    emit('    v_lshlrev_b32 v4, 12, v4')
    emit('    v_add_u32 v4, v4, v1')
    emit('    s_lshl_b32 s3, s2, 5')
    emit('    v_add_u32 v4, s3, v4')
    emit('    v_lshlrev_b32 v4, 1, v4')
    emit(f'    buffer_store_short v5, v4, s[16:19], 0 offen offset:{WS_Q}')
    emit('LA_end:')
    emit('LA_done:')
    emit('    s_endpgm')
    kernel_desc(name, 96)

def kB():
    name = 'kB_kernel'
    LDS_P = 0
    LDS_MX = 4096
    LDS_L = 4096 + 64
    LDS_RED = 8192
    launches.append((name, 256, LDS_RED + 32768))
    kernel_begin(name)
    emit('    s_cmp_ge_u32 s2, 256')
    emit('    s_cbranch_scc1 LB_done')
    emit('    s_load_dwordx2 s[4:5], s[0:1], 8')
    emit('    s_load_dwordx2 s[6:7], s[0:1], 16')
    emit('    s_load_dwordx2 s[20:21], s[0:1], 88')
    emit('    s_waitcnt lgkmcnt(0)')
    srd(8, 4, 134217728)
    srd(12, 6, 134217728)
    srd(16, 20, WS_SIZE)
    emit('    s_lshr_b32 s22, s2, 4')
    emit('    s_and_b32 s23, s2, 15')
    emit('    s_lshl_b32 s24, s22, 15')
    emit('    s_lshl_b32 s25, s23, 8')
    emit('    s_add_u32 s24, s24, s25')
    emit('    s_add_u32 s24, s24, 28672')
    emit('    s_lshl_b32 s24, s24, 8')
    emit('    v_lshrrev_b32 v1, 6, v0')
    emit('    v_and_b32 v2, 63, v0')
    emit('    v_and_b32 v3, 15, v2')
    emit('    v_lshrrev_b32 v4, 4, v2')
    emit('    v_lshlrev_b32 v5, 14, v1')
    emit('    v_lshl_add_u32 v5, v3, 8, v5')
    emit('    v_lshl_add_u32 v5, v4, 4, v5')
    emit('    v_lshlrev_b32 v6, 14, v1')
    emit('    v_lshl_add_u32 v6, v4, 8, v6')
    emit('    v_lshl_add_u32 v6, v3, 4, v6')
    emit('    v_lshlrev_b32 v7, 8, v3')
    emit('    v_lshl_add_u32 v7, v4, 4, v7')
    emit('    s_lshl_b32 s26, s22, 10')
    emit('    v_add_u32 v7, s26, v7')
    emit('    v_mov_b32 v8, 0x7fff0000')
    emit('    v_cmp_gt_u32 vcc, 4, v3')
    emit('    s_nop 1')
    emit('    v_cndmask_b32 v7, v8, v7, vcc')
    for kk in range(4):
        emit(f'    buffer_load_dwordx4 v[{16+4*kk}:{19+4*kk}], v7, s[16:19], 0 offen offset:{WS_Q+64*kk}')
    KB = 32
    VB = 96
    for tile in range(4):
        for kk in range(4):
            r = KB + (tile*4+kk)*4
            emit(f'    buffer_load_dwordx4 v[{r}:{r+3}], v5, s[8:11], s24 offen offset:{kk*64}')
        emit('    v_add_u32 v5, 4096, v5')
    for i in range(16):
        r = VB + 4*i
        emit(f'    buffer_load_dwordx4 v[{r}:{r+3}], v6, s[12:15], s24 offen offset:{(i%4)*1024}')
        if i % 4 == 3:
            emit('    v_add_u32 v6, 4096, v6')
    SB = 160
    for i in range(16):
        emit(f'    v_mov_b32 v{SB+i}, 0')
    emit('    s_waitcnt vmcnt(32)')
    for tile in range(4):
        emit(f'    s_waitcnt vmcnt({16 + 12 - 4*tile})')
        for kk in range(4):
            r = KB + (tile*4+kk)*4
            emit(f'    v_mfma_f32_16x16x32_bf16 v[{SB+4*tile}:{SB+4*tile+3}], v[{16+4*kk}:{19+4*kk}], v[{r}:{r+3}], v[{SB+4*tile}:{SB+4*tile+3}]')
    emit('    s_nop 7')
    emit('    s_nop 1')
    import math, struct
    c = math.log2(math.e) / math.sqrt(128.0)
    cbits = struct.unpack('<I', struct.pack('<f', c))[0]
    emit(f'    s_mov_b32 s27, 0x{cbits:08x}')
    for i in range(16):
        emit(f'    v_mul_f32 v{SB+i}, s27, v{SB+i}')
    for h in range(4):
        emit(f'    v_max_f32 v{176+h}, v{SB+h}, v{SB+4+h}')
        emit(f'    v_max3_f32 v{176+h}, v{176+h}, v{SB+8+h}, v{SB+12+h}')
    for r in (8, 4, 2, 1):
        emit('    s_nop 1')
        for h in range(4):
            emit(f'    v_max_f32_dpp v{176+h}, v{176+h}, v{176+h} row_ror:{r} row_mask:0xf bank_mask:0xf')
    emit('    v_lshlrev_b32 v9, 4, v1')
    emit('    v_cmp_eq_u32 vcc, 0, v2')
    emit('    s_and_saveexec_b64 s[36:37], vcc')
    emit(f'    ds_write_b128 v9, v[176:179] offset:{LDS_MX}')
    emit('    s_mov_b64 exec, s[36:37]')
    emit('    s_waitcnt lgkmcnt(0)')
    emit('    s_barrier')
    emit('    v_mov_b32 v9, 0')
    emit(f'    ds_read_b128 v[180:183], v9 offset:{LDS_MX}')
    emit(f'    ds_read_b128 v[184:187], v9 offset:{LDS_MX+16}')
    emit(f'    ds_read_b128 v[188:191], v9 offset:{LDS_MX+32}')
    emit(f'    ds_read_b128 v[192:195], v9 offset:{LDS_MX+48}')
    emit('    s_waitcnt lgkmcnt(0)')
    for h in range(4):
        emit(f'    v_max_f32 v{176+h}, v{180+h}, v{184+h}')
        emit(f'    v_max3_f32 v{176+h}, v{176+h}, v{188+h}, v{192+h}')
    for t in range(4):
        for h in range(4):
            emit(f'    v_sub_f32 v{SB+4*t+h}, v{SB+4*t+h}, v{176+h}')
            emit(f'    v_exp_f32 v{SB+4*t+h}, v{SB+4*t+h}')
    emit('    s_nop 0')
    for h in range(4):
        emit(f'    v_add_f32 v{180+h}, v{SB+h}, v{SB+4+h}')
        emit(f'    v_add_f32 v{184+h}, v{SB+8+h}, v{SB+12+h}')
        emit(f'    v_add_f32 v{180+h}, v{180+h}, v{184+h}')
    for r in (8, 4, 2, 1):
        emit('    s_nop 1')
        for h in range(4):
            emit(f'    v_add_f32_dpp v{180+h}, v{180+h}, v{180+h} row_ror:{r} row_mask:0xf bank_mask:0xf')
    emit('    v_lshlrev_b32 v9, 10, v1')
    emit('    v_lshl_add_u32 v9, v2, 4, v9')
    emit('    v_lshlrev_b32 v10, 4, v1')
    emit('    v_cmp_gt_u32 vcc, 16, v2')
    emit('    s_and_saveexec_b64 s[36:37], vcc')
    for t in range(4):
        emit(f'    ds_write_b128 v9, v[{SB+4*t}:{SB+4*t+3}] offset:{LDS_P+256*t}')
    emit('    v_cmp_eq_u32 vcc, 0, v2')
    emit('    s_and_saveexec_b64 s[38:39], vcc')
    emit(f'    ds_write_b128 v10, v[180:183] offset:{LDS_L}')
    emit('    s_mov_b64 exec, s[36:37]')
    emit('    s_waitcnt lgkmcnt(0)')
    emit('    s_barrier')
    AB = 200
    for i in range(32):
        emit(f'    v_mov_b32 v{AB+i}, 0')
    emit('    v_lshlrev_b32 v7, 10, v1')
    emit('    v_lshl_add_u32 v7, v4, 4, v7')
    for i in range(16):
        emit(f'    ds_read_b128 v[{SB}:{SB+3}], v7 offset:{LDS_P+64*i}')
        emit(f'    s_waitcnt vmcnt({15-i})')
        unpack8(VB + 4*i, 8)
        emit('    s_waitcnt lgkmcnt(0)')
        for h in range(4):
            for j in range(8):
                emit(f'    v_fmac_f32 v{AB+8*h+j}, v{SB+h}, v{8+j}')
    emit('    v_lshl_add_u32 v9, v1, 2, v4')
    emit('    v_lshlrev_b32 v9, 11, v9')
    emit('    v_lshl_add_u32 v9, v3, 5, v9')
    for h in range(4):
        emit(f'    ds_write_b128 v9, v[{AB+8*h}:{AB+8*h+3}] offset:{LDS_RED+512*h}')
        emit(f'    ds_write_b128 v9, v[{AB+8*h+4}:{AB+8*h+7}] offset:{LDS_RED+512*h+16}')
    emit('    s_waitcnt lgkmcnt(0)')
    emit('    s_barrier')
    emit('    v_lshlrev_b32 v9, 3, v0')
    for g in range(16):
        emit(f'    ds_read_b64 v[{16+2*g}:{17+2*g}], v9 offset:{LDS_RED+2048*g}')
    emit('    s_waitcnt lgkmcnt(0)')
    for g in range(1, 16):
        emit(f'    v_add_f32 v16, v16, v{16+2*g}')
        emit(f'    v_add_f32 v17, v17, v{17+2*g}')
    emit('    v_lshrrev_b32 v10, 6, v0')
    emit('    v_lshlrev_b32 v10, 13, v10')
    emit('    v_and_b32 v11, 63, v0')
    emit('    v_lshl_add_u32 v10, v11, 3, v10')
    emit('    s_lshl_b32 s28, s22, 15')
    emit('    s_lshl_b32 s29, s23, 9')
    emit('    s_add_u32 s28, s28, s29')
    emit(f'    s_add_u32 s28, s28, {WS_PO}')
    emit('    buffer_store_dwordx2 v[16:17], v10, s[16:19], s28 offen')
    emit(f'    ds_read_b128 v[20:23], v9 offset:{LDS_L}'.replace('v9', 'v12'))
    out.pop()
    emit('    v_cmp_gt_u32 vcc, 4, v0')
    emit('    s_and_saveexec_b64 s[36:37], vcc')
    emit('    v_lshlrev_b32 v12, 2, v0')
    for w in range(4):
        emit(f'    ds_read_b32 v{20+w}, v12 offset:{LDS_L+16*w}')
    emit('    s_waitcnt lgkmcnt(0)')
    emit('    v_add_f32 v20, v20, v21')
    emit('    v_add_f32 v22, v22, v23')
    emit('    v_add_f32 v21, v20, v22')
    emit('    v_mov_b32 v20, v176')
    for h in range(1, 4):
        emit(f'    v_cmp_eq_u32 vcc, {h}, v0')
        emit('    s_nop 1')
        emit(f'    v_cndmask_b32 v20, v20, v{176+h}, vcc')
    emit('    v_lshlrev_b32 v12, 7, v0')
    emit('    s_lshl_b32 s28, s22, 9')
    emit('    s_lshl_b32 s29, s23, 3')
    emit('    s_add_u32 s28, s28, s29')
    emit(f'    s_add_u32 s28, s28, {WS_ML}')
    emit('    buffer_store_dwordx2 v[20:21], v12, s[16:19], s28 offen')
    emit('LB_done:')
    emit('    s_endpgm')
    kernel_desc(name, 232)

def kC():
    name = 'kC_kernel'
    LDS_O = 16384
    launches.append((name, 256, 16384 + 1024))
    kernel_begin(name)
    emit('    s_cmp_ge_u32 s2, 256')
    emit('    s_cbranch_scc1 LC_done')
    emit('    s_load_dwordx2 s[6:7], s[0:1], 32')
    emit('    s_load_dwordx2 s[20:21], s[0:1], 88')
    emit('    s_waitcnt lgkmcnt(0)')
    srd(12, 6, 4194304)
    srd(16, 20, WS_SIZE)
    emit('    s_lshr_b32 s22, s2, 3')
    emit('    s_and_b32 s23, s2, 7')
    emit('    v_lshrrev_b32 v4, 3, v0')
    emit('    v_lshlrev_b32 v4, 10, v4')
    emit('    v_and_b32 v5, 7, v0')
    emit('    v_lshl_add_u32 v4, v5, 4, v4')
    emit('    s_lshl_b32 s24, s22, 17')
    emit('    s_lshl_b32 s25, s23, 7')
    emit('    s_add_u32 s24, s24, s25')
    for i in range(4):
        emit(f'    s_add_u32 s{28+i}, s24, {i*32768}')
    for i in range(4):
        emit(f'    buffer_load_dwordx4 v[{32+4*i}:{35+4*i}], v4, s[12:15], s{28+i} offen')
    emit('    v_lshrrev_b32 v6, 7, v0')
    emit('    v_lshlrev_b32 v7, 12, v6')
    emit('    s_lshl_b32 s26, s22, 7')
    emit('    v_add_u32 v7, s26, v7')
    emit(f'    s_mov_b32 s27, {WS_ML}')
    for i in range(8):
        emit(f'    buffer_load_dwordx4 v[{48+4*i}:{51+4*i}], v7, s[16:19], s27 offen offset:{16*i}')
    emit('    v_lshlrev_b32 v8, 18, v6')
    emit('    v_and_b32 v9, 127, v0')
    emit('    v_lshl_add_u32 v8, v9, 2, v8')
    emit('    s_lshl_b32 s26, s22, 13')
    emit(f'    s_add_u32 s26, s26, {WS_PO}')
    emit('    s_add_u32 s27, s26, 4096')
    for s in range(16):
        emit(f'    buffer_load_dword v{80+s}, v8, s[16:19], s{26 + s//8} offen offset:{512*(s%8)}')
    emit('    s_waitcnt vmcnt(16)')
    emit('    v_max_f32 v10, v48, v50')
    for s in range(2, 16):
        emit(f'    v_max_f32 v10, v10, v{48+2*s}')
    emit('    v_mov_b32 v11, 0')
    for s in range(16):
        emit(f'    v_sub_f32 v{48+2*s}, v{48+2*s}, v10')
        emit(f'    v_exp_f32 v{48+2*s}, v{48+2*s}')
        emit('    s_nop 0')
        emit(f'    v_fmac_f32 v11, v{48+2*s}, v{49+2*s}')
    emit('    v_rcp_f32 v11, v11')
    emit('    s_waitcnt vmcnt(0)')
    emit('    v_mov_b32 v12, 0')
    for s in range(16):
        emit(f'    v_fmac_f32 v12, v{48+2*s}, v{80+s}')
    emit('    v_mul_f32 v12, v12, v11')
    round_bf16(12, 13)
    emit('    v_lshlrev_b32 v13, 2, v0')
    emit(f'    ds_write_b32 v13, v12 offset:{LDS_O}')
    emit('    s_waitcnt lgkmcnt(0)')
    emit('    s_barrier')
    for i in range(16):
        emit(f'    v_mov_b32 v{64+i}, 0')
    emit('    v_lshrrev_b32 v5, 3, v0')
    emit('    v_lshlrev_b32 v5, 2, v5')
    for i in range(4):
        emit(f'    ds_read_b32 v{80+2*i}, v5 offset:{LDS_O+128*i}')
        emit(f'    ds_read_b32 v{81+2*i}, v5 offset:{LDS_O+512+128*i}')
    emit('    s_waitcnt lgkmcnt(0)')
    for i in range(4):
        unpack8(32 + 4*i, 16)
        for j in range(8):
            emit(f'    v_fmac_f32 v{64+j}, v{80+2*i}, v{16+j}')
            emit(f'    v_fmac_f32 v{72+j}, v{81+2*i}, v{16+j}')
    emit('    v_lshlrev_b32 v1, 6, v0')
    for q in range(4):
        emit(f'    ds_write_b128 v1, v[{64+4*q}:{67+4*q}] offset:{16*q}')
    emit('    s_waitcnt lgkmcnt(0)')
    emit('    s_barrier')
    emit('    v_cmp_gt_u32 vcc, 128, v0')
    emit('    s_and_saveexec_b64 s[36:37], vcc')
    emit('    s_cbranch_execz LC_done')
    emit('    v_and_b32 v1, 63, v0')
    emit('    v_lshrrev_b32 v2, 3, v1')
    emit('    v_lshlrev_b32 v2, 6, v2')
    emit('    v_and_b32 v3, 7, v1')
    emit('    v_lshrrev_b32 v4, 6, v0')
    emit('    v_lshl_add_u32 v3, v4, 3, v3')
    emit('    v_lshl_add_u32 v2, v3, 2, v2')
    emit('    v_mov_b32 v5, 0')
    for r0 in range(0, 32, 16):
        for r in range(16):
            emit(f'    ds_read_b32 v{16+r}, v2 offset:{(r0+r)*512}')
        emit('    s_waitcnt lgkmcnt(0)')
        for r in range(16):
            emit(f'    v_add_f32 v5, v5, v{16+r}')
    emit('    v_lshlrev_b32 v4, 11, v4')
    emit('    v_lshl_add_u32 v4, v1, 2, v4')
    emit('    s_lshl_b32 s24, s22, 12')
    emit('    s_lshl_b32 s25, s23, 8')
    emit('    s_add_u32 s24, s24, s25')
    emit(f'    s_add_u32 s24, s24, {WS_HP}')
    emit('    buffer_store_dword v5, v4, s[16:19], s24 offen')
    emit('LC_done:')
    emit('    s_endpgm')
    kernel_desc(name, 96)

def kD():
    name = 'kD_kernel'
    LDS_X = 32768
    launches.append((name, 112, 32768 + 4096 + 64))
    kernel_begin(name)
    emit('    s_cmp_ge_u32 s2, 112')
    emit('    s_cbranch_scc1 LD_done')
    emit('    s_load_dwordx2 s[4:5], s[0:1], 0')
    emit('    s_load_dwordx2 s[6:7], s[0:1], 48')
    emit('    s_load_dwordx2 s[22:23], s[0:1], 56')
    emit('    s_load_dwordx2 s[20:21], s[0:1], 88')
    emit('    s_waitcnt lgkmcnt(0)')
    srd(8, 4, 2048)
    srd(12, 6, 1835008)
    srd(44, 22, 1835008)
    srd(16, 20, WS_SIZE)
    emit('    v_lshrrev_b32 v4, 1, v0')
    emit('    s_movk_i32 s3, 3584')
    emit('    v_mul_lo_u32 v4, v4, s3')
    emit('    v_and_b32 v5, 1, v0')
    emit('    v_lshl_add_u32 v4, v5, 4, v4')
    emit('    s_lshl_b32 s24, s2, 5')
    for i in range(4):
        emit(f'    s_add_u32 s{28+i}, s24, {i*128*3584}')
    for i in range(4):
        emit(f'    buffer_load_dwordx4 v[{96+4*i}:{99+4*i}], v4, s[12:15], s{28+i} offen')
        emit(f'    buffer_load_dwordx4 v[{112+4*i}:{115+4*i}], v4, s[44:47], s{28+i} offen')
    emit('    v_lshlrev_b32 v1, 3, v0')
    emit('    buffer_load_dwordx2 v[2:3], v1, s[8:11], 0 offen')
    emit('    v_lshlrev_b32 v1, 4, v0')
    for hh in range(32):
        emit(f'    s_mov_b32 s26, {WS_HP + hh*4096}')
        emit(f'    buffer_load_dwordx4 v[{128+4*hh}:{131+4*hh}], v1, s[16:19], s26 offen')
    emit('    s_waitcnt vmcnt(32)')
    emit('    v_lshlrev_b32 v8, 16, v2')
    emit('    v_and_b32 v9, 0xffff0000, v2')
    emit('    v_lshlrev_b32 v10, 16, v3')
    emit('    v_and_b32 v11, 0xffff0000, v3')
    emit('    s_waitcnt vmcnt(0)')
    for j in range(4):
        for hh in range(1, 32):
            emit(f'    v_add_f32 v{128+j}, v{128+j}, v{128+4*hh+j}')
    for j in range(4):
        round_bf16(128 + j, 12)
        emit(f'    v_add_f32 v{8+j}, v{8+j}, v{128+j}')
        round_bf16(8 + j, 12)
    emit('    s_cmp_lg_u32 s2, 0')
    emit('    s_cbranch_scc1 LD_noh')
    emit(f'    buffer_store_dwordx4 v[8:11], v1, s[16:19], 0 offen offset:0'.replace('offset:0', f'offset:{0}'))
    out.pop()
    emit(f'    s_mov_b32 s26, {WS_H}')
    emit('    buffer_store_dwordx4 v[8:11], v1, s[16:19], s26 offen')
    emit('    s_nop 1')
    emit('LD_noh:')
    ln_rows(8, 12, LDS_X + 4096)
    emit('    v_lshlrev_b32 v1, 4, v0')
    emit(f'    ds_write_b128 v1, v[8:11] offset:{LDS_X}')
    emit('    s_waitcnt lgkmcnt(0)')
    emit('    s_barrier')
    for i in range(32):
        emit(f'    v_mov_b32 v{32+i}, 0')
    emit('    v_lshrrev_b32 v5, 1, v0')
    emit('    v_lshlrev_b32 v5, 2, v5')
    for i in range(4):
        emit(f'    ds_read_b32 v{80+2*i}, v5 offset:{LDS_X+512*i}')
        emit(f'    ds_read_b32 v{81+2*i}, v5 offset:{LDS_X+2048+512*i}')
    emit('    s_waitcnt lgkmcnt(0)')
    for i in range(4):
        unpack8(96 + 4*i, 16)
        unpack8(112 + 4*i, 24)
        for j in range(8):
            emit(f'    v_fmac_f32 v{32+j}, v{80+2*i}, v{16+j}')
            emit(f'    v_fmac_f32 v{40+j}, v{81+2*i}, v{16+j}')
            emit(f'    v_fmac_f32 v{48+j}, v{80+2*i}, v{24+j}')
            emit(f'    v_fmac_f32 v{56+j}, v{81+2*i}, v{24+j}')
    emit('    v_lshlrev_b32 v1, 7, v0')
    for q in range(8):
        emit(f'    ds_write_b128 v1, v[{32+4*q}:{35+4*q}] offset:{16*q}')
    emit('    s_waitcnt lgkmcnt(0)')
    emit('    s_barrier')
    emit('    v_cmp_gt_u32 vcc, 32, v0')
    emit('    s_and_saveexec_b64 s[36:37], vcc')
    emit('    s_cbranch_execz LD_done')
    emit('    v_and_b32 v1, 15, v0')
    emit('    v_lshrrev_b32 v2, 3, v1')
    emit('    v_lshlrev_b32 v2, 7, v2')
    emit('    v_and_b32 v3, 7, v1')
    emit('    v_lshrrev_b32 v4, 4, v0')
    emit('    v_lshl_add_u32 v3, v4, 3, v3')
    emit('    v_lshl_add_u32 v2, v3, 2, v2')
    emit('    v_mov_b32 v5, 0')
    emit('    v_mov_b32 v6, 0')
    for r0 in range(0, 128, 16):
        for r in range(16):
            emit(f'    ds_read_b32 v{16+r}, v2 offset:{(r0+r)*256}')
            emit(f'    ds_read_b32 v{32+r}, v2 offset:{(r0+r)*256+64}')
        emit('    s_waitcnt lgkmcnt(0)')
        for r in range(16):
            emit(f'    v_add_f32 v5, v5, v{16+r}')
            emit(f'    v_add_f32 v6, v6, v{32+r}')
    round_bf16(5, 7)
    round_bf16(6, 7)
    emit('    v_mul_f32 v7, 0xbfb8aa3b, v5')
    emit('    v_exp_f32 v7, v7')
    emit('    s_nop 0')
    emit('    v_add_f32 v7, 1.0, v7')
    emit('    v_rcp_f32 v7, v7')
    emit('    s_nop 0')
    round_bf16(7, 8)
    emit('    v_mul_f32 v5, v7, v6')
    round_bf16(5, 8)
    emit('    s_movk_i32 s3, 7168')
    emit('    v_mul_lo_u32 v4, v4, s3')
    emit('    v_lshl_add_u32 v4, v1, 2, v4')
    emit('    s_lshl_b32 s24, s2, 6')
    emit(f'    s_add_u32 s24, s24, {WS_HH}')
    emit('    buffer_store_dword v5, v4, s[16:19], s24 offen')
    emit('LD_done:')
    emit('    s_endpgm')
    kernel_desc(name, 256)

def kE():
    name = 'kE_kernel'
    launches.append((name, 64, 16384 + 1024))
    kernel_begin(name)
    emit('    s_cmp_ge_u32 s2, 64')
    emit('    s_cbranch_scc1 LE_done')
    emit('    s_load_dwordx2 s[6:7], s[0:1], 64')
    emit('    s_load_dwordx2 s[22:23], s[0:1], 72')
    emit('    s_load_dwordx2 s[20:21], s[0:1], 88')
    emit('    s_waitcnt lgkmcnt(0)')
    srd(12, 6, 1835008)
    srd(8, 22, 2048)
    srd(16, 20, WS_SIZE)
    emit('    v_lshlrev_b32 v4, 10, v0')
    emit('    s_lshl_b32 s24, s2, 4')
    for i in range(7):
        emit(f'    s_add_u32 s{28+i}, s24, {i*262144}')
    for i in range(7):
        emit(f'    buffer_load_dwordx4 v[{32+4*i}:{35+4*i}], v4, s[12:15], s{28+i} offen')
    emit('    v_lshlrev_b32 v5, 2, v0')
    for i in range(7):
        emit(f'    buffer_load_dword v{64+2*i}, v5, s[16:19], 0 offen offset:{0}'.replace('offset:0', f'offset:{1024*i}'))
        out.pop()
        emit(f'    s_mov_b32 s26, {WS_HH + 1024*i}')
        emit(f'    buffer_load_dword v{64+2*i}, v5, s[16:19], s26 offen')
        emit(f'    s_mov_b32 s27, {WS_HH + 7168 + 1024*i}')
        emit(f'    buffer_load_dword v{65+2*i}, v5, s[16:19], s27 offen')
    for i in range(16):
        emit(f'    v_mov_b32 v{80+i}, 0')
    emit('    s_waitcnt vmcnt(0)')
    for i in range(7):
        unpack8(32 + 4*i, 16)
        for j in range(8):
            emit(f'    v_fmac_f32 v{80+j}, v{64+2*i}, v{16+j}')
            emit(f'    v_fmac_f32 v{88+j}, v{65+2*i}, v{16+j}')
    emit('    v_lshlrev_b32 v1, 6, v0')
    for q in range(4):
        emit(f'    ds_write_b128 v1, v[{80+4*q}:{83+4*q}] offset:{16*q}')
    emit('    s_waitcnt lgkmcnt(0)')
    emit('    s_barrier')
    emit('    v_lshrrev_b32 v2, 4, v0')
    emit('    v_lshlrev_b32 v2, 10, v2')
    emit('    v_and_b32 v3, 15, v0')
    emit('    v_lshl_add_u32 v2, v3, 2, v2')
    for r in range(16):
        emit(f'    ds_read_b32 v{16+r}, v2 offset:{64*r}')
    emit('    s_waitcnt lgkmcnt(0)')
    for r in range(1, 16):
        emit(f'    v_add_f32 v16, v16, v{16+r}')
    emit('    v_lshlrev_b32 v1, 2, v0')
    emit('    ds_write_b32 v1, v16 offset:16384')
    emit('    s_waitcnt lgkmcnt(0)')
    emit('    s_barrier')
    emit('    v_cmp_gt_u32 vcc, 16, v0')
    emit('    s_and_saveexec_b64 s[36:37], vcc')
    emit('    s_cbranch_execz LE_done')
    for r in range(16):
        emit(f'    ds_read_b32 v{16+r}, v1 offset:{16384+64*r}')
    emit('    v_lshrrev_b32 v4, 3, v0')
    emit('    v_and_b32 v3, 7, v0')
    emit('    v_lshl_add_u32 v5, v4, 9, v3')
    emit('    s_lshl_b32 s24, s2, 3')
    emit('    v_add_u32 v5, s24, v5')
    emit('    v_lshlrev_b32 v6, 2, v5')
    emit(f'    s_mov_b32 s26, {WS_H}')
    emit('    buffer_load_dword v7, v6, s[16:19], s26 offen')
    emit('    s_waitcnt lgkmcnt(0)')
    for r in range(1, 16):
        emit(f'    v_add_f32 v16, v16, v{16+r}')
    round_bf16(16, 8)
    emit('    s_waitcnt vmcnt(0)')
    emit('    v_add_f32 v16, v16, v7')
    emit('    v_cvt_pk_bf16_f32 v16, v16, v16')
    emit('    v_lshlrev_b32 v6, 1, v5')
    emit('    buffer_store_short v16, v6, s[8:11], 0 offen')
    emit('LE_done:')
    emit('    s_endpgm')
    kernel_desc(name, 96)

emit('.amdgcn_target "amdgcn-amd-amdhsa--gfx950"')
kA(); kB(); kC(); kD(); kE()

hdr = HEADER
for name, g, lds in launches:
    hdr += f'; @launch kernel={name} grid=({g},1,1) block=(256,1,1) lds={lds}\n'
open('sequential_preLN__sliding_block_cached__glu_gated_glu__decode.s', 'w').write(hdr + '\n'.join(out) + '\n')
print('ok')
```

```python
import math, struct, sys

NAME = 'sequential_preLN__sliding_block_cached__glu_gated_glu__decode'
HEADER = open(f'cdna_kernels/{NAME}.s.ref').read().split('; Override launch')[0]

G_Q = 0
G_PO = 65536
G_ML = G_PO + (1 << 20)
G_HP = G_ML + 65536
G_H = G_HP + 262144
G_HH = G_H + 65536
WS_SIZE = 2 << 20

SPIN_MAX = 200000

out = []
def emit(s=''):
    out.append(s)

def srd(sreg, ptr_lo, nbytes):
    emit(f'    s_mov_b32 s{sreg}, s{ptr_lo}')
    emit(f'    s_mov_b32 s{sreg+1}, s{ptr_lo+1}')
    emit(f'    s_mov_b32 s{sreg+2}, {nbytes}')
    emit(f'    s_mov_b32 s{sreg+3}, 0x00020000')

def wave_sum(v, tmp_s=60):
    for r in (8, 4, 2, 1):
        emit('    s_nop 1')
        emit(f'    v_add_f32_dpp v{v}, v{v}, v{v} row_ror:{r} row_mask:0xf bank_mask:0xf')
    emit('    s_nop 1')
    for i, l in enumerate((0, 16, 32, 48)):
        emit(f'    v_readlane_b32 s{tmp_s+i}, v{v}, {l}')
    emit('    s_nop 1')
    emit(f'    v_mov_b32 v{v}, s{tmp_s}')
    for i in range(1, 4):
        emit(f'    v_add_f32 v{v}, s{tmp_s+i}, v{v}')

def round_bf16(v, tmp):
    emit(f'    v_cvt_pk_bf16_f32 v{tmp}, v{v}, v{v}')
    emit(f'    v_lshlrev_b32 v{v}, 16, v{tmp}')

def unpack8(src, dst):
    for i in range(4):
        emit(f'    v_lshlrev_b32 v{dst+2*i}, 16, v{src+i}')
        emit(f'    v_and_b32 v{dst+2*i+1}, 0xffff0000, v{src+i}')

def ln_rows(vx, vt, lds_off):
    emit(f'    v_add_f32 v{vt}, v{vx}, v{vx+1}')
    emit(f'    v_add_f32 v{vt+1}, v{vx+2}, v{vx+3}')
    emit(f'    v_add_f32 v{vt}, v{vt}, v{vt+1}')
    wave_sum(vt)
    emit(f'    v_lshrrev_b32 v{vt+1}, 6, v0')
    emit(f'    v_lshlrev_b32 v{vt+1}, 2, v{vt+1}')
    emit(f'    ds_write_b32 v{vt+1}, v{vt} offset:{lds_off}')
    emit('    s_waitcnt lgkmcnt(0)')
    emit('    s_barrier')
    emit(f'    v_lshrrev_b32 v{vt+2}, 7, v0')
    emit(f'    v_lshlrev_b32 v{vt+2}, 3, v{vt+2}')
    emit(f'    ds_read_b64 v[{vt+4}:{vt+5}], v{vt+2} offset:{lds_off}')
    emit('    s_waitcnt lgkmcnt(0)')
    emit(f'    v_add_f32 v{vt}, v{vt+4}, v{vt+5}')
    emit(f'    v_mul_f32 v{vt}, 0x3b000000, v{vt}')
    for i in range(4):
        emit(f'    v_sub_f32 v{vx+i}, v{vx+i}, v{vt}')
    emit(f'    v_mul_f32 v{vt}, v{vx}, v{vx}')
    for i in range(1, 4):
        emit(f'    v_fmac_f32 v{vt}, v{vx+i}, v{vx+i}')
    wave_sum(vt)
    emit(f'    ds_write_b32 v{vt+1}, v{vt} offset:{lds_off+16}')
    emit('    s_waitcnt lgkmcnt(0)')
    emit('    s_barrier')
    emit(f'    ds_read_b64 v[{vt+4}:{vt+5}], v{vt+2} offset:{lds_off+16}')
    emit('    s_waitcnt lgkmcnt(0)')
    emit(f'    v_add_f32 v{vt}, v{vt+4}, v{vt+5}')
    emit(f'    v_mov_b32 v{vt+3}, 0x3727c5ac')
    emit(f'    v_fmac_f32 v{vt+3}, 0x3b000000, v{vt}')
    emit(f'    v_rsq_f32 v{vt+3}, v{vt+3}')
    emit('    s_nop 0')
    for i in range(4):
        emit(f'    v_mul_f32 v{vx+i}, v{vx+i}, v{vt+3}')
        round_bf16(vx + i, vt)

NONCE = 's80'
import os
STAMP = int(os.environ.get('STAMP', '-1'))
stamp_i = [0]
def stamp(tag=''):
    if STAMP < 0:
        return
    i = stamp_i[0]; stamp_i[0] += 1
    emit(f'    s_cmp_lg_u32 s2, {STAMP}')
    emit(f'    s_cbranch_scc1 Lst{i}')
    emit('    s_memrealtime s[98:99]')
    emit('    s_waitcnt lgkmcnt(0)')
    emit('    s_mov_b64 s[100:101], exec')
    emit('    s_mov_b64 exec, 1')
    emit('    v_mov_b32 v255, s98')
    emit('    v_mov_b32 v254, 0')
    emit(f'    buffer_store_dword v255, v254, s[48:51], 0 offen offset:{16+4*i}')
    emit('    s_mov_b64 exec, s[100:101]')
    if tag in ('start', 'end'):
        emit('    s_memtime s[98:99]')
        emit('    s_waitcnt lgkmcnt(0)')
        emit('    s_mov_b64 s[100:101], exec')
        emit('    s_mov_b64 exec, 1')
        emit('    v_mov_b32 v255, s98')
        emit(f'    buffer_store_dword v255, v254, s[48:51], 0 offen offset:{200 if tag=="start" else 204}')
        emit('    s_mov_b64 exec, s[100:101]')
    emit(f'Lst{i}:  ; {tag}')
lbl = [0]
def poll(loads, tags, execmask=None):
    lbl[0] += 1
    L = f'Lpoll{lbl[0]}'
    emit(f'    s_mov_b32 s81, {SPIN_MAX}')
    emit(f'{L}:')
    for ld in loads:
        emit('    ' + ld)
    emit('    s_waitcnt vmcnt(0)')
    emit(f'    v_cmp_ne_u32 vcc, {NONCE}, v{tags[0]}')
    for t in tags[1:]:
        emit(f'    v_cmp_ne_u32 s[82:83], {NONCE}, v{t}')
        emit('    s_or_b64 vcc, vcc, s[82:83]')
    emit(f'    s_cbranch_vccz {L}_ok')
    emit('    s_sub_u32 s81, s81, 1')
    emit('    s_cmp_eq_u32 s81, 0')
    emit(f'    s_cbranch_scc0 {L}')
    emit(f'{L}_ok:')

WQ, KB, VB, WO, WGU, WD = 32, 48, 112, 176, 192, 208

NOW = os.environ.get('NOW', '')
def gen():
    emit('.amdgcn_target "amdgcn-amd-amdhsa--gfx950"')
    emit('.text')
    kn = NAME + '_kernel'
    emit(f'.globl {kn}')
    emit('.p2align 8')
    emit(f'.type {kn},@function')
    emit(f'{kn}:')
    emit('    s_cmp_ge_u32 s2, 256')
    emit('    s_cbranch_scc1 L_done')
    emit('    s_load_dwordx16 s[64:79], s[0:1], 0')
    emit('    s_load_dwordx8 s[84:91], s[0:1], 64')
    emit('    s_memrealtime s[92:93]')
    emit('    s_waitcnt lgkmcnt(0)')
    srd(8, 64, 2048)
    srd(16, 66, 134217728)
    srd(20, 68, 134217728)
    srd(12, 70, 4194304)
    srd(24, 72, 4194304)
    srd(28, 76, 1835008)
    srd(32, 78, 1835008)
    srd(36, 84, 1835008)
    srd(40, 86, 2048)
    srd(48, 88, 256)
    srd(44, 90, WS_SIZE)
    stamp('start')
    emit('    s_or_b32 s92, s92, 1')
    emit('    v_mov_b32 v2, s92')
    emit('    v_mov_b32 v3, 0')
    emit('    v_mov_b32 v1, 0')
    emit('    v_cmp_eq_u32 vcc, 0, v0')
    emit('    s_and_saveexec_b64 s[82:83], vcc')
    emit('    buffer_atomic_cmpswap v[2:3], v1, s[48:51], 0 offen sc0')
    emit('    s_mov_b64 exec, s[82:83]')
    emit('    v_lshlrev_b32 v1, 3, v0')
    emit('    buffer_load_dwordx2 v[4:5], v1, s[8:11], 0 offen')
    emit('    v_lshrrev_b32 v6, 1, v0')
    emit('    v_lshlrev_b32 v6, 13, v6')
    emit('    v_and_b32 v7, 1, v0')
    emit('    v_lshl_add_u32 v6, v7, 4, v6')
    emit('    s_lshl_b32 s52, s2, 5')
    for i in range(4):
        emit(f'    s_add_u32 s53, s52, {i*128*8192}')
        emit(f'    buffer_load_dwordx4 v[{WQ+4*i}:{WQ+4*i+3}], v6, s[12:15], s53 offen')
    emit('    s_lshr_b32 s54, s2, 4')
    emit('    s_and_b32 s55, s2, 15')
    emit('    s_lshl_b32 s56, s54, 15')
    emit('    s_lshl_b32 s57, s55, 8')
    emit('    s_add_u32 s56, s56, s57')
    emit('    s_add_u32 s56, s56, 28672')
    emit('    s_lshl_b32 s56, s56, 8')
    emit('    v_lshrrev_b32 v8, 6, v0')
    emit('    v_and_b32 v9, 63, v0')
    emit('    v_and_b32 v10, 15, v9')
    emit('    v_lshrrev_b32 v11, 4, v9')
    emit('    v_lshlrev_b32 v12, 8, v10')
    emit('    v_lshl_add_u32 v12, v11, 4, v12')
    emit('    v_lshlrev_b32 v13, 8, v11')
    emit('    v_lshl_add_u32 v13, v10, 4, v13')
    emit('    v_lshlrev_b32 v14, 2, v8')
    emit('    v_add_u32 v14, s2, v14')
    for tile in range(4):
        emit(f'    v_add_u32 v15, {tile}, v14')
        emit('    v_and_b32 v15, 15, v15')
        emit('    v_lshl_add_u32 v15, v15, 12, v12')
        for kk in range(4):
            r = KB + (tile*4+kk)*4
            emit(f'    buffer_load_dwordx4 v[{r}:{r+3}], v15, s[16:19], s56 offen offset:{kk*64}')
    stamp('loads issued')
    emit('    s_waitcnt vmcnt(16)')
    emit('    v_cmp_eq_u32 vcc, 0, v2')
    emit('    v_mov_b32 v3, s92')
    emit('    v_cndmask_b32 v2, v2, v3, vcc')
    emit('    v_mov_b32 v3, 0')
    emit('    v_cmp_eq_u32 vcc, 0, v0')
    emit('    s_and_saveexec_b64 s[82:83], vcc')
    emit('    ds_write_b32 v3, v2 offset:20544')
    emit('    s_mov_b64 exec, s[82:83]')
    emit('    v_lshlrev_b32 v16, 16, v4')
    emit('    v_and_b32 v17, 0xffff0000, v4')
    emit('    v_lshlrev_b32 v18, 16, v5')
    emit('    v_and_b32 v19, 0xffff0000, v5')
    LDS_XN = 16384
    LDS_S = 20480
    LDS_R2 = 20736
    ln_rows(16, 20, LDS_S)
    emit('    v_mov_b32 v3, 0')
    emit('    ds_read_b32 v2, v3 offset:20544')
    emit('    v_lshlrev_b32 v1, 4, v0')
    emit(f'    ds_write_b128 v1, v[16:19] offset:{LDS_XN}')
    emit('    s_waitcnt lgkmcnt(0)')
    emit(f'    v_readfirstlane_b32 {NONCE}, v2')
    emit('    s_barrier')
    ACC = 236
    for i in range(16):
        emit(f'    v_mov_b32 v{ACC+i}, 0')
    emit('    v_lshrrev_b32 v6, 1, v0')
    emit('    v_lshlrev_b32 v6, 2, v6')
    for i in range(4):
        emit(f'    ds_read_b32 v{24+2*i}, v6 offset:{LDS_XN+512*i}')
        emit(f'    ds_read_b32 v{25+2*i}, v6 offset:{LDS_XN+2048+512*i}')
    emit('    s_waitcnt lgkmcnt(0)')
    for i in range(4):
        unpack8(WQ + 4*i, 16)
        for j in range(8):
            emit(f'    v_fmac_f32 v{ACC+j}, v{24+2*i}, v{16+j}')
            emit(f'    v_fmac_f32 v{ACC+8+j}, v{25+2*i}, v{16+j}')
    emit('    v_lshlrev_b32 v1, 6, v0')
    for q in range(4):
        emit(f'    ds_write_b128 v1, v[{ACC+4*q}:{ACC+4*q+3}] offset:{16*q}')
    emit('    s_waitcnt lgkmcnt(0)')
    emit('    s_barrier')
    emit('    v_and_b32 v1, 15, v0')
    emit('    v_lshrrev_b32 v2, 3, v1')
    emit('    v_lshlrev_b32 v2, 6, v2')
    emit('    v_and_b32 v3, 7, v1')
    emit('    v_bfe_u32 v4, v0, 4, 1')
    emit('    v_lshl_add_u32 v3, v4, 3, v3')
    emit('    v_lshl_add_u32 v2, v3, 2, v2')
    emit('    v_lshrrev_b32 v5, 5, v0')
    emit('    v_lshl_add_u32 v2, v5, 11, v2')
    for r in range(16):
        emit(f'    ds_read_b32 v{16+r}, v2 offset:{r*128}')
    emit('    s_waitcnt lgkmcnt(0)')
    for r in range(1, 16):
        emit(f'    v_add_f32 v16, v16, v{16+r}')
    emit('    v_lshlrev_b32 v1, 2, v0')
    emit(f'    ds_write_b32 v1, v16 offset:{LDS_R2}')
    emit('    s_waitcnt lgkmcnt(0)')
    emit('    s_barrier')
    emit('    v_cmp_gt_u32 vcc, 16, v0')
    emit('    s_and_saveexec_b64 s[82:83], vcc')
    emit('    v_lshlrev_b32 v1, 3, v0')
    for g in range(8):
        emit(f'    ds_read_b64 v[{16+2*g}:{17+2*g}], v1 offset:{LDS_R2+128*g}')
    emit('    s_waitcnt lgkmcnt(0)')
    for g in range(1, 8):
        emit(f'    v_add_f32 v16, v16, v{16+2*g}')
        emit(f'    v_add_f32 v17, v17, v{17+2*g}')
    emit('    v_cvt_pk_bf16_f32 v2, v16, v17')
    emit(f'    v_mov_b32 v3, {NONCE}')
    emit('    v_lshrrev_b32 v4, 3, v0')
    emit('    v_lshlrev_b32 v4, 11, v4')
    emit('    v_and_b32 v5, 7, v0')
    emit('    v_add_u32 v4, v4, v5')
    emit('    v_lshlrev_b32 v4, 3, v4')
    emit('    s_lshl_b32 s52, s2, 6')
    emit(f'    buffer_store_dwordx2 v[2:3], v4, s[44:47], s52 offen offset:{G_Q} sc0 sc1')
    emit('    s_mov_b64 exec, s[82:83]')
    stamp('q published')
    emit('    v_lshlrev_b32 v4, 3, v0')
    emit('    s_lshl_b32 s52, s54, 11')
    poll([f'buffer_load_dwordx2 v[2:3], v4, s[44:47], s52 offen offset:{G_Q} sc0 sc1'], [3])
    for i in range(16):
        r = VB + 4*i
        if i % 4 == 0:
            emit(f'    v_add_u32 v15, {i//4}, v14')
            emit('    v_and_b32 v15, 15, v15')
            emit('    v_lshl_add_u32 v15, v15, 12, v13')
        emit(f'    buffer_load_dwordx4 v[{r}:{r+3}], v15, s[20:23], s56 offen offset:{(i%4)*1024}')
    emit('    s_lshr_b32 s58, s2, 3')
    emit('    s_and_b32 s59, s2, 7')
    emit('    v_lshrrev_b32 v6, 3, v0')
    emit('    v_lshlrev_b32 v6, 10, v6')
    emit('    v_and_b32 v7, 7, v0')
    emit('    v_lshl_add_u32 v6, v7, 4, v6')
    emit('    s_lshl_b32 s52, s58, 17')
    emit('    s_lshl_b32 s53, s59, 7')
    emit('    s_add_u32 s52, s52, s53')
    for i in range(4):
        if 'o' not in NOW: emit(f'    buffer_load_dwordx4 v[{WO+4*i}:{WO+4*i+3}], v6, s[24:27], s52 offen')
        emit('    s_add_u32 s52, s52, 32768')
    emit('    s_cmp_ge_u32 s2, %d' % (0 if 'g' in NOW else 224))
    emit('    s_cbranch_scc1 L_nogu')
    emit('    s_movk_i32 s3, 3584')
    emit('    v_mul_lo_u32 v6, v0, s3')
    emit('    s_lshl_b32 s52, s2, 4')
    for i in range(2):
        emit(f'    buffer_load_dwordx4 v[{WGU+4*i}:{WGU+4*i+3}], v6, s[28:31], s52 offen')
        emit(f'    buffer_load_dwordx4 v[{WGU+8+4*i}:{WGU+8+4*i+3}], v6, s[32:35], s52 offen')
        emit(f'    s_add_u32 s52, s52, {256*3584}')
    emit('L_nogu:')
    emit('    s_cmp_lt_u32 s2, %d' % (256 if 'd' in NOW else 192))
    emit('    s_cbranch_scc1 L_nowd')
    emit('    v_lshlrev_b32 v6, 10, v0')
    emit('    s_sub_u32 s52, s2, 192')
    emit('    s_lshl_b32 s52, s52, 4')
    for i in range(7):
        emit(f'    buffer_load_dwordx4 v[{WD+4*i}:{WD+4*i+3}], v6, s[36:39], s52 offen')
        emit('    s_add_u32 s52, s52, 262144')
    emit('L_nowd:')
    LDS_Q = 0
    emit('    s_barrier')
    emit('    v_lshlrev_b32 v1, 2, v0')
    emit(f'    ds_write_b32 v1, v2 offset:{LDS_Q}')
    emit('    s_waitcnt lgkmcnt(0)')
    emit('    s_barrier')
    stamp('q arrived')
    emit('    v_lshlrev_b32 v1, 8, v10')
    emit('    v_lshl_add_u32 v1, v11, 4, v1')
    QA = 16
    for kk in range(4):
        emit(f'    ds_read_b128 v[{QA+4*kk}:{QA+4*kk+3}], v1 offset:{LDS_Q+64*kk}')
    emit('    s_waitcnt lgkmcnt(0)')
    emit('    v_cmp_gt_u32 vcc, 4, v10')
    emit('    s_nop 1')
    for i in range(16):
        emit(f'    v_cndmask_b32 v{QA+i}, 0, v{QA+i}, vcc')
    SB = 236
    for i in range(16):
        emit(f'    v_mov_b32 v{SB+i}, 0')
    emit('    s_nop 1')
    for tile in range(4):
        for kk in range(4):
            r = KB + (tile*4+kk)*4
            emit(f'    v_mfma_f32_16x16x32_bf16 v[{SB+4*tile}:{SB+4*tile+3}], v[{QA+4*kk}:{QA+4*kk+3}], v[{r}:{r+3}], v[{SB+4*tile}:{SB+4*tile+3}]')
    emit('    s_nop 7')
    emit('    s_nop 1')
    c = math.log2(math.e) / math.sqrt(128.0)
    cbits = struct.unpack('<I', struct.pack('<f', c))[0]
    emit(f'    s_mov_b32 s52, 0x{cbits:08x}')
    for i in range(16):
        emit(f'    v_mul_f32 v{SB+i}, s52, v{SB+i}')
    MX = KB
    for h in range(4):
        emit(f'    v_max_f32 v{MX+h}, v{SB+h}, v{SB+4+h}')
        emit(f'    v_max3_f32 v{MX+h}, v{MX+h}, v{SB+8+h}, v{SB+12+h}')
    for r in (8, 4, 2, 1):
        emit('    s_nop 1')
        for h in range(4):
            emit(f'    v_max_f32_dpp v{MX+h}, v{MX+h}, v{MX+h} row_ror:{r} row_mask:0xf bank_mask:0xf')
    LDS_P = 1024
    LDS_MX = 5120
    LDS_L = 5184
    LDS_RED = 8192
    emit('    v_lshlrev_b32 v1, 4, v8')
    emit('    v_cmp_eq_u32 vcc, 0, v9')
    emit('    s_and_saveexec_b64 s[82:83], vcc')
    emit(f'    ds_write_b128 v1, v[{MX}:{MX+3}] offset:{LDS_MX}')
    emit('    s_mov_b64 exec, s[82:83]')
    emit('    s_waitcnt lgkmcnt(0)')
    emit('    s_barrier')
    emit('    v_mov_b32 v1, 0')
    for w in range(4):
        emit(f'    ds_read_b128 v[{MX+4+4*w}:{MX+7+4*w}], v1 offset:{LDS_MX+16*w}')
    emit('    s_waitcnt lgkmcnt(0)')
    for h in range(4):
        emit(f'    v_max_f32 v{MX+h}, v{MX+4+h}, v{MX+8+h}')
        emit(f'    v_max3_f32 v{MX+h}, v{MX+h}, v{MX+12+h}, v{MX+16+h}')
    for t in range(4):
        for h in range(4):
            emit(f'    v_sub_f32 v{SB+4*t+h}, v{SB+4*t+h}, v{MX+h}')
            emit(f'    v_exp_f32 v{SB+4*t+h}, v{SB+4*t+h}')
    emit('    s_nop 0')
    LS = MX + 4
    for h in range(4):
        emit(f'    v_add_f32 v{LS+h}, v{SB+h}, v{SB+4+h}')
        emit(f'    v_add_f32 v{LS+4+h}, v{SB+8+h}, v{SB+12+h}')
        emit(f'    v_add_f32 v{LS+h}, v{LS+h}, v{LS+4+h}')
    for r in (8, 4, 2, 1):
        emit('    s_nop 1')
        for h in range(4):
            emit(f'    v_add_f32_dpp v{LS+h}, v{LS+h}, v{LS+h} row_ror:{r} row_mask:0xf bank_mask:0xf')
    emit('    v_lshlrev_b32 v1, 10, v8')
    emit('    v_lshl_add_u32 v1, v9, 4, v1')
    emit('    v_lshlrev_b32 v2, 4, v8')
    emit('    v_cmp_gt_u32 vcc, 16, v9')
    emit('    s_and_saveexec_b64 s[82:83], vcc')
    for t in range(4):
        emit(f'    ds_write_b128 v1, v[{SB+4*t}:{SB+4*t+3}] offset:{LDS_P+256*t}')
    emit('    v_cmp_eq_u32 vcc, 0, v9')
    emit('    s_and_saveexec_b64 s[84:85], vcc')
    emit(f'    ds_write_b128 v2, v[{LS}:{LS+3}] offset:{LDS_L}')
    emit('    s_mov_b64 exec, s[82:83]')
    emit('    s_waitcnt lgkmcnt(0)')
    emit('    s_barrier')
    AB = KB + 16
    for i in range(32):
        emit(f'    v_mov_b32 v{AB+i}, 0')
    emit('    v_lshlrev_b32 v1, 10, v8')
    emit('    v_lshl_add_u32 v1, v11, 4, v1')
    for i in range(16):
        emit(f'    ds_read_b128 v[{SB}:{SB+3}], v1 offset:{LDS_P+64*i}')
        emit(f'    s_waitcnt vmcnt({15-i+4})')
        unpack8(VB + 4*i, 16)
        emit('    s_waitcnt lgkmcnt(0)')
        for h in range(4):
            for j in range(8):
                emit(f'    v_fmac_f32 v{AB+8*h+j}, v{SB+h}, v{16+j}')
    emit('    v_lshl_add_u32 v1, v8, 2, v11')
    emit('    v_lshlrev_b32 v1, 11, v1')
    emit('    v_lshl_add_u32 v1, v10, 5, v1')
    for h in range(4):
        emit(f'    ds_write_b128 v1, v[{AB+8*h}:{AB+8*h+3}] offset:{LDS_RED+512*h}')
        emit(f'    ds_write_b128 v1, v[{AB+8*h+4}:{AB+8*h+7}] offset:{LDS_RED+512*h+16}')
    emit('    s_waitcnt lgkmcnt(0)')
    emit('    s_barrier')
    emit('    v_lshlrev_b32 v1, 3, v0')
    T = 96
    T = 16
    for g in range(16):
        emit(f'    ds_read_b64 v[{T+2*g}:{T+1+2*g}], v1 offset:{LDS_RED+2048*g}')
    emit('    s_waitcnt lgkmcnt(0)')
    for g in range(1, 16):
        emit(f'    v_add_f32 v{T}, v{T}, v{T+2*g}')
        emit(f'    v_add_f32 v{T+1}, v{T+1}, v{T+1+2*g}')
    emit(f'    v_mov_b32 v{T+4}, v{T}')
    emit(f'    v_mov_b32 v{T+5}, {NONCE}')
    emit(f'    v_mov_b32 v{T+6}, v{T+1}')
    emit(f'    v_mov_b32 v{T+7}, {NONCE}')
    emit('    v_lshlrev_b32 v2, 14, v8')
    emit('    v_lshl_add_u32 v2, v9, 4, v2')
    emit('    s_lshl_b32 s52, s54, 16')
    emit('    s_lshl_b32 s53, s55, 10')
    emit('    s_add_u32 s52, s52, s53')
    emit(f'    s_add_u32 s52, s52, {G_PO}')
    emit(f'    buffer_store_dwordx4 v[{T+4}:{T+7}], v2, s[44:47], s52 offen sc0 sc1')
    emit('    v_cmp_gt_u32 vcc, 4, v0')
    emit('    s_and_saveexec_b64 s[82:83], vcc')
    emit('    v_lshlrev_b32 v2, 2, v0')
    for w in range(4):
        emit(f'    ds_read_b32 v{T+8+w}, v2 offset:{LDS_L+16*w}')
    emit('    s_waitcnt lgkmcnt(0)')
    emit(f'    v_add_f32 v{T+8}, v{T+8}, v{T+9}')
    emit(f'    v_add_f32 v{T+10}, v{T+10}, v{T+11}')
    emit(f'    v_add_f32 v{T+13}, v{T+8}, v{T+10}')
    emit(f'    v_mov_b32 v{T+12}, v{MX}')
    for h in range(1, 4):
        emit(f'    v_cmp_eq_u32 vcc, {h}, v0')
        emit('    s_nop 1')
        emit(f'    v_cndmask_b32 v{T+12}, v{T+12}, v{MX+h}, vcc')
    emit(f'    v_mov_b32 v{T+14}, {NONCE}')
    emit(f'    v_mov_b32 v{T+15}, {NONCE}')
    emit('    v_lshlrev_b32 v2, 8, v0')
    emit('    s_lshl_b32 s52, s54, 10')
    emit('    s_lshl_b32 s53, s55, 4')
    emit('    s_add_u32 s52, s52, s53')
    emit(f'    s_add_u32 s52, s52, {G_ML}')
    emit(f'    buffer_store_dwordx4 v[{T+12}:{T+15}], v2, s[44:47], s52 offen sc0 sc1')
    emit('    s_mov_b64 exec, s[82:83]')
    stamp('B published')
    emit('    v_lshrrev_b32 v6, 7, v0')
    emit('    v_and_b32 v7, 127, v0')
    emit('    v_lshlrev_b32 v1, 19, v6')
    emit('    v_lshl_add_u32 v1, v7, 3, v1')
    emit('    s_lshl_b32 s52, s58, 14')
    emit(f'    s_add_u32 s52, s52, {G_PO}')
    emit('    s_add_u32 s53, s52, 4096')
    emit('    s_add_u32 s94, s52, 8192')
    emit('    s_add_u32 s95, s52, 12288')
    emit('    v_lshlrev_b32 v2, 13, v6')
    emit('    s_lshl_b32 s96, s58, 8')
    emit(f'    s_add_u32 s96, s96, {G_ML}')
    PO = 48
    ML = 80
    loads = []
    soffs = ['s52', 's53', 's94', 's95']
    for s in range(16):
        loads.append(f'buffer_load_dwordx2 v[{PO+2*s}:{PO+2*s+1}], v1, s[44:47], {soffs[s//4]} offen offset:{1024*(s%4)} sc0 sc1')
    for s in range(16):
        loads.append(f'buffer_load_dwordx4 v[{ML+4*s}:{ML+4*s+3}], v2, s[44:47], s96 offen offset:{16*s} sc0 sc1')
    poll(loads, [PO+2*s+1 for s in range(16)] + [ML+4*s+2 for s in range(16)])
    stamp('C polled')
    emit(f'    v_max_f32 v3, v{ML}, v{ML+4}')
    for s in range(2, 16):
        emit(f'    v_max_f32 v3, v3, v{ML+4*s}')
    emit('    v_mov_b32 v4, 0')
    emit('    v_mov_b32 v5, 0')
    for s in range(16):
        emit(f'    v_sub_f32 v{ML+4*s}, v{ML+4*s}, v3')
        emit(f'    v_exp_f32 v{ML+4*s}, v{ML+4*s}')
        emit('    s_nop 0')
        emit(f'    v_fmac_f32 v4, v{ML+4*s}, v{ML+4*s+1}')
        emit(f'    v_fmac_f32 v5, v{ML+4*s}, v{PO+2*s}')
    emit('    v_rcp_f32 v4, v4')
    emit('    s_nop 0')
    emit('    v_mul_f32 v5, v5, v4')
    round_bf16(5, 3)
    LDS_O = 16384
    emit('    s_barrier')
    emit('    v_lshlrev_b32 v3, 2, v0')
    emit(f'    ds_write_b32 v3, v5 offset:{LDS_O}')
    emit('    s_waitcnt lgkmcnt(0)')
    emit('    s_barrier')
    for i in range(16):
        emit(f'    v_mov_b32 v{ACC+i}, 0')
    emit('    v_lshrrev_b32 v5, 3, v0')
    emit('    v_lshlrev_b32 v5, 2, v5')
    for i in range(4):
        emit(f'    ds_read_b32 v{24+2*i}, v5 offset:{LDS_O+128*i}')
        emit(f'    ds_read_b32 v{25+2*i}, v5 offset:{LDS_O+512+128*i}')
    emit('    s_waitcnt lgkmcnt(0)')
    for i in range(4):
        unpack8(WO + 4*i, 16)
        for j in range(8):
            emit(f'    v_fmac_f32 v{ACC+j}, v{24+2*i}, v{16+j}')
            emit(f'    v_fmac_f32 v{ACC+8+j}, v{25+2*i}, v{16+j}')
    emit('    v_lshlrev_b32 v1, 6, v0')
    for q in range(4):
        emit(f'    ds_write_b128 v1, v[{ACC+4*q}:{ACC+4*q+3}] offset:{16*q}')
    emit('    s_waitcnt lgkmcnt(0)')
    emit('    s_barrier')
    emit('    v_cmp_gt_u32 vcc, 128, v0')
    emit('    s_and_saveexec_b64 s[82:83], vcc')
    emit('    v_and_b32 v1, 63, v0')
    emit('    v_lshrrev_b32 v2, 3, v1')
    emit('    v_lshlrev_b32 v2, 6, v2')
    emit('    v_and_b32 v3, 7, v1')
    emit('    v_lshrrev_b32 v4, 6, v0')
    emit('    v_lshl_add_u32 v3, v4, 3, v3')
    emit('    v_lshl_add_u32 v2, v3, 2, v2')
    for r in range(32):
        emit(f'    ds_read_b32 v{16+r}, v2 offset:{r*512}')
    emit('    s_waitcnt lgkmcnt(0)')
    for r in range(1, 32):
        emit(f'    v_add_f32 v16, v16, v{16+r}')
    emit(f'    v_mov_b32 v17, {NONCE}')
    emit('    v_lshrrev_b32 v2, 2, v0')
    emit('    v_lshlrev_b32 v2, 10, v2')
    emit('    v_and_b32 v3, 3, v0')
    emit('    v_lshl_add_u32 v2, v3, 3, v2')
    emit('    s_lshl_b32 s52, s59, 15')
    emit('    s_lshl_b32 s53, s58, 5')
    emit('    s_add_u32 s52, s52, s53')
    emit(f'    s_add_u32 s52, s52, {G_HP}')
    emit('    buffer_store_dwordx2 v[16:17], v2, s[44:47], s52 offen sc0 sc1')
    stamp('C published')
    emit('    v_lshlrev_b32 v2, 3, v0')
    emit('    s_lshl_b32 s52, s59, 15')
    emit('    s_lshl_b32 s53, s58, 10')
    emit('    s_add_u32 s52, s52, s53')
    emit(f'    s_add_u32 s52, s52, {G_HP}')
    poll(['buffer_load_dwordx2 v[16:17], v2, s[44:47], s52 offen sc0 sc1'], [17])
    emit('    v_lshlrev_b32 v2, 2, v0')
    emit(f'    ds_write_b32 v2, v16 offset:{LDS_S}')
    emit('    s_mov_b64 exec, s[82:83]')
    emit('    s_waitcnt lgkmcnt(0)')
    emit('    s_barrier')
    emit('    v_cmp_gt_u32 vcc, 4, v0')
    emit('    s_and_saveexec_b64 s[82:83], vcc')
    emit('    v_lshlrev_b32 v2, 2, v0')
    for r in range(32):
        emit(f'    ds_read_b32 v{16+r}, v2 offset:{LDS_S+16*r}')
    emit('    s_lshl_b32 s52, s58, 2')
    emit('    s_lshr_b32 s53, s52, 6')
    emit('    s_and_b32 s52, s52, 63')
    emit('    s_lshl_b32 s53, s53, 9')
    emit('    s_add_u32 s52, s52, s53')
    emit('    s_lshl_b32 s53, s59, 6')
    emit('    s_add_u32 s52, s52, s53')
    emit('    v_add_u32 v3, s52, v0')
    emit('    v_lshlrev_b32 v4, 1, v3')
    emit('    buffer_load_ushort v5, v4, s[8:11], 0 offen')
    emit('    s_waitcnt lgkmcnt(0)')
    for r in range(1, 32):
        emit(f'    v_add_f32 v16, v16, v{16+r}')
    round_bf16(16, 6)
    emit('    s_waitcnt vmcnt(0)')
    emit('    v_lshlrev_b32 v5, 16, v5')
    emit('    v_add_f32 v16, v16, v5')
    round_bf16(16, 6)
    emit(f'    v_mov_b32 v17, {NONCE}')
    emit('    v_lshlrev_b32 v4, 3, v3')
    emit(f'    s_mov_b32 s52, {G_H}')
    emit('    buffer_store_dwordx2 v[16:17], v4, s[44:47], s52 offen sc0 sc1')
    emit('    s_mov_b64 exec, s[82:83]')
    stamp('R published')
    emit('    v_lshlrev_b32 v2, 5, v0')
    emit(f'    s_mov_b32 s52, {G_H}')
    poll(['buffer_load_dwordx4 v[16:19], v2, s[44:47], s52 offen sc0 sc1',
          'buffer_load_dwordx4 v[20:23], v2, s[44:47], s52 offen offset:16 sc0 sc1'], [17, 19, 21, 23])
    stamp('D polled')
    HV = 48
    emit(f'    v_mov_b32 v{HV}, v16')
    emit(f'    v_mov_b32 v{HV+1}, v18')
    emit(f'    v_mov_b32 v{HV+2}, v20')
    emit(f'    v_mov_b32 v{HV+3}, v22')
    LDS_H = 24576
    emit('    v_lshlrev_b32 v1, 4, v0')
    emit(f'    ds_write_b128 v1, v[{HV}:{HV+3}] offset:{LDS_H}')
    emit('    s_cmp_ge_u32 s2, 224')
    emit('    s_cbranch_scc1 L_skipD')
    ln_rows(HV, 20, LDS_S + 512)
    emit('    v_lshlrev_b32 v1, 4, v0')
    emit(f'    ds_write_b128 v1, v[{HV}:{HV+3}] offset:{LDS_XN}')
    emit('    s_waitcnt lgkmcnt(0)')
    emit('    s_barrier')
    GA = 64
    for i in range(32):
        emit(f'    v_mov_b32 v{GA+i}, 0')
    emit('    v_lshlrev_b32 v5, 2, v0')
    for i in range(2):
        emit(f'    ds_read_b32 v{52+2*i}, v5 offset:{LDS_XN+1024*i}')
        emit(f'    ds_read_b32 v{53+2*i}, v5 offset:{LDS_XN+2048+1024*i}')
    emit('    s_waitcnt lgkmcnt(0)')
    for i in range(2):
        unpack8(WGU + 4*i, 16)
        unpack8(WGU + 8 + 4*i, 24)
        for j in range(8):
            emit(f'    v_fmac_f32 v{GA+j}, v{52+2*i}, v{16+j}')
            emit(f'    v_fmac_f32 v{GA+8+j}, v{53+2*i}, v{16+j}')
            emit(f'    v_fmac_f32 v{GA+16+j}, v{52+2*i}, v{24+j}')
            emit(f'    v_fmac_f32 v{GA+24+j}, v{53+2*i}, v{24+j}')
    LDS_D = 28672
    emit('    v_lshlrev_b32 v1, 7, v0')
    for q in range(8):
        emit(f'    ds_write_b128 v1, v[{GA+4*q}:{GA+4*q+3}] offset:{LDS_D+16*q}')
    emit('    s_waitcnt lgkmcnt(0)')
    emit('    s_barrier')
    emit('    v_and_b32 v1, 31, v0')
    emit('    v_lshlrev_b32 v1, 2, v1')
    emit('    v_lshrrev_b32 v2, 5, v0')
    emit('    v_lshl_add_u32 v1, v2, 12, v1')
    for r in range(32):
        emit(f'    ds_read_b32 v{16+r}, v1 offset:{LDS_D+128*r}')
    emit('    s_waitcnt lgkmcnt(0)')
    for r in range(1, 32):
        emit(f'    v_add_f32 v16, v16, v{16+r}')
    emit('    v_lshlrev_b32 v1, 2, v0')
    emit(f'    ds_write_b32 v1, v16 offset:{LDS_R2}')
    emit('    s_waitcnt lgkmcnt(0)')
    emit('    s_barrier')
    emit('    v_cmp_gt_u32 vcc, 8, v0')
    emit('    s_and_saveexec_b64 s[82:83], vcc')
    emit('    v_lshlrev_b32 v1, 2, v0')
    for g in range(8):
        for q in range(4):
            emit(f'    ds_read_b32 v{16+4*g+q}, v1 offset:{LDS_R2+128*g+32*q}')
    emit('    s_waitcnt lgkmcnt(0)')
    for g in range(1, 8):
        for q in range(4):
            emit(f'    v_add_f32 v{16+q}, v{16+q}, v{16+4*g+q}')
    for q in range(4):
        round_bf16(16 + q, 20)
    for b in range(2):
        emit(f'    v_mul_f32 v{20+b}, 0xbfb8aa3b, v{16+b}')
        emit(f'    v_exp_f32 v{20+b}, v{20+b}')
        emit('    s_nop 0')
        emit(f'    v_add_f32 v{20+b}, 1.0, v{20+b}')
        emit(f'    v_rcp_f32 v{20+b}, v{20+b}')
        emit('    s_nop 0')
        round_bf16(20 + b, 22)
        emit(f'    v_mul_f32 v{20+b}, v{20+b}, v{18+b}')
    emit('    v_cvt_pk_bf16_f32 v2, v20, v21')
    emit(f'    v_mov_b32 v3, {NONCE}')
    emit('    v_lshlrev_b32 v1, 3, v0')
    emit('    s_lshl_b32 s52, s2, 6')
    emit(f'    s_add_u32 s52, s52, {G_HH}')
    emit('    buffer_store_dwordx2 v[2:3], v1, s[44:47], s52 offen sc0 sc1')
    emit('    s_mov_b64 exec, s[82:83]')
    emit('L_skipD:')
    stamp('D published')
    emit('    s_cmp_lt_u32 s2, 192')
    emit('    s_cbranch_scc1 L_done')
    emit('    v_lshlrev_b32 v2, 3, v0')
    emit(f'    s_mov_b32 s52, {G_HH}')
    emit(f'    s_mov_b32 s53, {G_HH+4096}')
    emit(f'    s_mov_b32 s94, {G_HH+8192}')
    emit(f'    s_mov_b32 s95, {G_HH+12288}')
    HHR = 48
    loads = []
    for i in range(7):
        so = ['s52', 's53', 's94', 's95'][i // 2]
        loads.append(f'buffer_load_dwordx2 v[{HHR+2*i}:{HHR+2*i+1}], v2, s[44:47], {so} offen offset:{2048*(i%2)} sc0 sc1')
    poll(loads, [HHR+2*i+1 for i in range(7)])
    stamp('E polled')
    for i in range(16):
        emit(f'    v_mov_b32 v{ACC+i}, 0')
    for i in range(7):
        emit(f'    v_lshlrev_b32 v24, 16, v{HHR+2*i}')
        emit(f'    v_and_b32 v25, 0xffff0000, v{HHR+2*i}')
        unpack8(WD + 4*i, 16)
        for j in range(8):
            emit(f'    v_fmac_f32 v{ACC+j}, v24, v{16+j}')
            emit(f'    v_fmac_f32 v{ACC+8+j}, v25, v{16+j}')
    emit('    s_barrier')
    emit('    v_lshlrev_b32 v1, 6, v0')
    for q in range(4):
        emit(f'    ds_write_b128 v1, v[{ACC+4*q}:{ACC+4*q+3}] offset:{16*q}')
    emit('    s_waitcnt lgkmcnt(0)')
    emit('    s_barrier')
    emit('    v_lshrrev_b32 v2, 4, v0')
    emit('    v_lshlrev_b32 v2, 10, v2')
    emit('    v_and_b32 v3, 15, v0')
    emit('    v_lshl_add_u32 v2, v3, 2, v2')
    for r in range(16):
        emit(f'    ds_read_b32 v{16+r}, v2 offset:{64*r}')
    emit('    s_waitcnt lgkmcnt(0)')
    for r in range(1, 16):
        emit(f'    v_add_f32 v16, v16, v{16+r}')
    emit('    v_lshlrev_b32 v1, 2, v0')
    emit(f'    ds_write_b32 v1, v16 offset:{LDS_R2}')
    emit('    s_waitcnt lgkmcnt(0)')
    emit('    s_barrier')
    emit('    v_cmp_gt_u32 vcc, 16, v0')
    emit('    s_and_saveexec_b64 s[82:83], vcc')
    for r in range(16):
        emit(f'    ds_read_b32 v{16+r}, v1 offset:{LDS_R2+64*r}')
    emit('    v_lshrrev_b32 v4, 3, v0')
    emit('    v_and_b32 v3, 7, v0')
    emit('    v_lshl_add_u32 v5, v4, 9, v3')
    emit('    s_sub_u32 s52, s2, 192')
    emit('    s_lshl_b32 s52, s52, 3')
    emit('    v_add_u32 v5, s52, v5')
    emit('    v_lshlrev_b32 v6, 2, v5')
    emit(f'    ds_read_b32 v7, v6 offset:{LDS_H}')
    emit('    s_waitcnt lgkmcnt(0)')
    for r in range(1, 16):
        emit(f'    v_add_f32 v16, v16, v{16+r}')
    round_bf16(16, 8)
    emit('    v_add_f32 v16, v16, v7')
    emit('    v_cvt_pk_bf16_f32 v16, v16, v16')
    emit('    v_lshlrev_b32 v6, 1, v5')
    emit('    buffer_store_short v16, v6, s[40:43], 0 offen')
    stamp('end')
    emit('L_done:')
    emit('    s_endpgm')
    emit('.section .rodata,"a"')
    emit('.p2align 6')
    emit(f'.amdhsa_kernel {kn}')
    emit('  .amdhsa_next_free_vgpr 256')
    emit('  .amdhsa_next_free_sgpr 102')
    emit('  .amdhsa_accum_offset 256')
    emit('  .amdhsa_group_segment_fixed_size 0')
    emit('  .amdhsa_kernarg_size 96')
    emit('  .amdhsa_user_sgpr_count 2')
    emit('  .amdhsa_user_sgpr_kernarg_segment_ptr 1')
    emit('  .amdhsa_system_sgpr_workgroup_id_x 1')
    emit('.end_amdhsa_kernel')

gen()
hdr = HEADER + '; @launch grid=(256,1,1) block=(256,1,1) lds=65536\n'
dst = sys.argv[1] if len(sys.argv) > 1 else f'cdna_kernels/{NAME}.s'
open(dst, 'w').write(hdr + '\n'.join(out) + '\n')
print('ok', len(out))
```

```python
import math, struct, sys

NAME = 'sequential_preLN__sliding_block_cached__glu_gated_glu__decode'
HEADER = open(f'cdna_kernels/{NAME}.s.ref').read().split('; Override launch')[0]

G_Q = 0
G_PO = 65536
G_ML = G_PO + (1 << 20)
G_HP = G_ML + 65536
G_H = G_HP + 262144
G_HH = G_H + 65536
WS_SIZE = 2 << 20

SPIN_MAX = 100000

out = []
def emit(s=''):
    out.append(s)

def srd(sreg, ptr_lo, nbytes):
    emit(f'    s_mov_b32 s{sreg}, s{ptr_lo}')
    emit(f'    s_mov_b32 s{sreg+1}, s{ptr_lo+1}')
    emit(f'    s_mov_b32 s{sreg+2}, {nbytes}')
    emit(f'    s_mov_b32 s{sreg+3}, 0x00020000')

def wave_sum(v, tmp_s=60):
    for r in (8, 4, 2, 1):
        emit('    s_nop 1')
        emit(f'    v_add_f32_dpp v{v}, v{v}, v{v} row_ror:{r} row_mask:0xf bank_mask:0xf')
    emit('    s_nop 1')
    for i, l in enumerate((0, 16, 32, 48)):
        emit(f'    v_readlane_b32 s{tmp_s+i}, v{v}, {l}')
    emit('    s_nop 1')
    emit(f'    v_mov_b32 v{v}, s{tmp_s}')
    for i in range(1, 4):
        emit(f'    v_add_f32 v{v}, s{tmp_s+i}, v{v}')

def round_bf16(v, tmp):
    emit(f'    v_cvt_pk_bf16_f32 v{tmp}, v{v}, v{v}')
    emit(f'    v_lshlrev_b32 v{v}, 16, v{tmp}')

def unpack8(src, dst):
    for i in range(4):
        emit(f'    v_lshlrev_b32 v{dst+2*i}, 16, v{src+i}')
        emit(f'    v_and_b32 v{dst+2*i+1}, 0xffff0000, v{src+i}')

def ln_rows(vx, vt, lds_off):
    emit(f'    v_add_f32 v{vt}, v{vx}, v{vx+1}')
    emit(f'    v_add_f32 v{vt+1}, v{vx+2}, v{vx+3}')
    emit(f'    v_add_f32 v{vt}, v{vt}, v{vt+1}')
    wave_sum(vt)
    emit(f'    v_lshrrev_b32 v{vt+1}, 6, v0')
    emit(f'    v_lshlrev_b32 v{vt+1}, 2, v{vt+1}')
    emit(f'    ds_write_b32 v{vt+1}, v{vt} offset:{lds_off}')
    emit('    s_waitcnt lgkmcnt(0)')
    emit('    s_barrier')
    emit(f'    v_lshrrev_b32 v{vt+2}, 7, v0')
    emit(f'    v_lshlrev_b32 v{vt+2}, 3, v{vt+2}')
    emit(f'    ds_read_b64 v[{vt+4}:{vt+5}], v{vt+2} offset:{lds_off}')
    emit('    s_waitcnt lgkmcnt(0)')
    emit(f'    v_add_f32 v{vt}, v{vt+4}, v{vt+5}')
    emit(f'    v_mul_f32 v{vt}, 0x3b000000, v{vt}')
    for i in range(4):
        emit(f'    v_sub_f32 v{vx+i}, v{vx+i}, v{vt}')
    emit(f'    v_mul_f32 v{vt}, v{vx}, v{vx}')
    for i in range(1, 4):
        emit(f'    v_fmac_f32 v{vt}, v{vx+i}, v{vx+i}')
    wave_sum(vt)
    emit(f'    ds_write_b32 v{vt+1}, v{vt} offset:{lds_off+16}')
    emit('    s_waitcnt lgkmcnt(0)')
    emit('    s_barrier')
    emit(f'    ds_read_b64 v[{vt+4}:{vt+5}], v{vt+2} offset:{lds_off+16}')
    emit('    s_waitcnt lgkmcnt(0)')
    emit(f'    v_add_f32 v{vt}, v{vt+4}, v{vt+5}')
    emit(f'    v_mov_b32 v{vt+3}, 0x3727c5ac')
    emit(f'    v_fmac_f32 v{vt+3}, 0x3b000000, v{vt}')
    emit(f'    v_rsq_f32 v{vt+3}, v{vt+3}')
    emit('    s_nop 0')
    for i in range(4):
        emit(f'    v_mul_f32 v{vx+i}, v{vx+i}, v{vt+3}')
        round_bf16(vx + i, vt)

NONCE = 's80'
import os
STAMP = int(os.environ.get('STAMP', '-1'))
stamp_i = [0]
def stamp(tag=''):
    if STAMP < 0:
        return
    i = stamp_i[0]; stamp_i[0] += 1
    emit(f'    s_cmp_lg_u32 s2, {STAMP}')
    emit(f'    s_cbranch_scc1 Lst{i}')
    emit('    s_memrealtime s[98:99]')
    emit('    s_waitcnt lgkmcnt(0)')
    emit('    s_mov_b64 s[100:101], exec')
    emit('    s_mov_b64 exec, 1')
    emit('    v_mov_b32 v255, s98')
    emit('    v_mov_b32 v254, 0')
    emit(f'    buffer_store_dword v255, v254, s[48:51], 0 offen offset:{16+4*i}')
    emit('    s_mov_b64 exec, s[100:101]')
    if tag in ('start', 'end'):
        emit('    s_memtime s[98:99]')
        emit('    s_waitcnt lgkmcnt(0)')
        emit('    s_mov_b64 s[100:101], exec')
        emit('    s_mov_b64 exec, 1')
        emit('    v_mov_b32 v255, s98')
        emit(f'    buffer_store_dword v255, v254, s[48:51], 0 offen offset:{200 if tag=="start" else 204}')
        emit('    s_mov_b64 exec, s[100:101]')
    emit(f'Lst{i}:  ; {tag}')
lbl = [0]
def poll(loads, tags, execmask=None):
    lbl[0] += 1
    L = f'Lpoll{lbl[0]}'
    emit(f'    s_mov_b32 s81, {SPIN_MAX}')
    emit(f'{L}:')
    for ld in loads:
        emit('    ' + ld)
    emit('    s_waitcnt vmcnt(0)')
    emit(f'    v_cmp_ne_u32 vcc, {NONCE}, v{tags[0]}')
    for t in tags[1:]:
        emit(f'    v_cmp_ne_u32 s[82:83], {NONCE}, v{t}')
        emit('    s_or_b64 vcc, vcc, s[82:83]')
    emit(f'    s_cbranch_vccz {L}_ok')
    emit('    s_sleep %s' % os.environ.get('SLP','6'))
    emit('    s_sub_u32 s81, s81, 1')
    emit('    s_cmp_eq_u32 s81, 0')
    emit(f'    s_cbranch_scc0 {L}')
    emit(f'{L}_ok:')

WQ, KB, VB, WO, WGU, WD = 32, 48, 112, 176, 192, 208

NOW = os.environ.get('NOW', '')
def gen():
    emit('.amdgcn_target "amdgcn-amd-amdhsa--gfx950"')
    emit('.text')
    kn = NAME + '_kernel'
    emit(f'.globl {kn}')
    emit('.p2align 8')
    emit(f'.type {kn},@function')
    emit(f'{kn}:')
    emit('    s_cmp_ge_u32 s2, 256')
    emit('    s_cbranch_scc1 L_done')
    emit('    s_load_dwordx16 s[64:79], s[0:1], 0')
    emit('    s_load_dwordx8 s[84:91], s[0:1], 64')
    emit('    s_memrealtime s[92:93]')
    emit('    s_waitcnt lgkmcnt(0)')
    srd(8, 64, 2048)
    srd(16, 66, 134217728)
    srd(20, 68, 134217728)
    srd(12, 70, 4194304)
    srd(24, 72, 4194304)
    srd(28, 76, 1835008)
    srd(32, 78, 1835008)
    srd(36, 84, 1835008)
    srd(40, 86, 2048)
    srd(48, 88, 256)
    srd(44, 90, WS_SIZE)
    emit('    s_and_b32 s4, s2, 7')
    emit('    s_lshr_b32 s5, s2, 5')
    emit('    s_lshl_b32 s5, s5, 3')
    emit('    s_or_b32 s5, s5, s4')
    emit('    s_lshl_b32 s5, s5, 2')
    emit('    s_bfe_u32 s97, s2, 0x20003')
    emit('    s_add_u32 s97, s97, s5')
    emit('    s_lshr_b32 s5, s2, 6')
    emit('    s_lshl_b32 s5, s5, 3')
    emit('    s_or_b32 s5, s5, s4')
    emit('    s_lshl_b32 s5, s5, 3')
    emit('    s_bfe_u32 s6, s2, 0x30003')
    emit('    s_add_u32 s6, s6, s5')
    emit('    s_sub_u32 s7, s2, 192')
    emit('    s_lshr_b32 s7, s7, 3')
    emit('    s_lshl_b32 s5, s4, 3')
    emit('    s_add_u32 s7, s7, s5')
    stamp('start')
    emit('    s_or_b32 s92, s92, 1')
    emit('    v_mov_b32 v2, s92')
    emit('    v_mov_b32 v3, 0')
    emit('    v_mov_b32 v1, 0')
    emit('    v_cmp_eq_u32 vcc, 0, v0')
    emit('    s_and_saveexec_b64 s[82:83], vcc')
    emit('    buffer_atomic_cmpswap v[2:3], v1, s[48:51], 0 offen sc0')
    emit('    s_mov_b64 exec, s[82:83]')
    emit('    v_lshlrev_b32 v1, 3, v0')
    emit('    buffer_load_dwordx2 v[4:5], v1, s[8:11], 0 offen')
    emit('    v_lshrrev_b32 v6, 1, v0')
    emit('    v_lshlrev_b32 v6, 13, v6')
    emit('    v_and_b32 v7, 1, v0')
    emit('    v_lshl_add_u32 v6, v7, 4, v6')
    emit('    s_lshl_b32 s52, s97, 5')
    for i in range(4):
        emit(f'    s_add_u32 s53, s52, {i*128*8192}')
        emit(f'    buffer_load_dwordx4 v[{WQ+4*i}:{WQ+4*i+3}], v6, s[12:15], s53 offen')
    emit('    s_lshr_b32 s54, s2, 4')
    emit('    s_and_b32 s55, s2, 15')
    emit('    s_lshl_b32 s56, s54, 15')
    emit('    s_lshl_b32 s57, s55, 8')
    emit('    s_add_u32 s56, s56, s57')
    emit('    s_add_u32 s56, s56, 28672')
    emit('    s_lshl_b32 s56, s56, 8')
    emit('    v_lshrrev_b32 v8, 6, v0')
    emit('    v_and_b32 v9, 63, v0')
    emit('    v_and_b32 v10, 15, v9')
    emit('    v_lshrrev_b32 v11, 4, v9')
    emit('    v_lshlrev_b32 v12, 8, v10')
    emit('    v_lshl_add_u32 v12, v11, 4, v12')
    emit('    v_lshlrev_b32 v13, 8, v11')
    emit('    v_lshl_add_u32 v13, v10, 4, v13')
    emit('    v_lshlrev_b32 v14, 2, v8')
    emit('    v_add_u32 v14, s2, v14')
    for tile in range(4):
        emit(f'    v_add_u32 v15, {tile}, v14')
        emit('    v_and_b32 v15, 15, v15')
        emit('    v_lshl_add_u32 v15, v15, 12, v12')
        for kk in range(4):
            r = KB + (tile*4+kk)*4
            emit(f'    buffer_load_dwordx4 v[{r}:{r+3}], v15, s[16:19], s56 offen offset:{kk*64}')
    stamp('loads issued')
    emit('    s_waitcnt vmcnt(16)')
    emit('    v_cmp_eq_u32 vcc, 0, v2')
    emit('    v_mov_b32 v3, s92')
    emit('    v_cndmask_b32 v2, v2, v3, vcc')
    emit('    v_mov_b32 v3, 0')
    emit('    v_cmp_eq_u32 vcc, 0, v0')
    emit('    s_and_saveexec_b64 s[82:83], vcc')
    emit('    ds_write_b32 v3, v2 offset:20544')
    emit('    s_mov_b64 exec, s[82:83]')
    emit('    v_lshlrev_b32 v16, 16, v4')
    emit('    v_and_b32 v17, 0xffff0000, v4')
    emit('    v_lshlrev_b32 v18, 16, v5')
    emit('    v_and_b32 v19, 0xffff0000, v5')
    LDS_XN = 16384
    LDS_S = 20480
    LDS_R2 = 20736
    ln_rows(16, 20, LDS_S)
    emit('    v_mov_b32 v3, 0')
    emit('    ds_read_b32 v2, v3 offset:20544')
    emit('    v_lshlrev_b32 v1, 4, v0')
    emit(f'    ds_write_b128 v1, v[16:19] offset:{LDS_XN}')
    emit('    s_waitcnt lgkmcnt(0)')
    emit(f'    v_readfirstlane_b32 {NONCE}, v2')
    emit('    s_barrier')
    ACC = 236
    for i in range(16):
        emit(f'    v_mov_b32 v{ACC+i}, 0')
    emit('    v_lshrrev_b32 v6, 1, v0')
    emit('    v_lshlrev_b32 v6, 2, v6')
    for i in range(4):
        emit(f'    ds_read_b32 v{24+2*i}, v6 offset:{LDS_XN+512*i}')
        emit(f'    ds_read_b32 v{25+2*i}, v6 offset:{LDS_XN+2048+512*i}')
    emit('    s_waitcnt lgkmcnt(0)')
    for i in range(4):
        unpack8(WQ + 4*i, 16)
        for j in range(8):
            emit(f'    v_fmac_f32 v{ACC+j}, v{24+2*i}, v{16+j}')
            emit(f'    v_fmac_f32 v{ACC+8+j}, v{25+2*i}, v{16+j}')
    emit('    v_lshlrev_b32 v1, 6, v0')
    for q in range(4):
        emit(f'    ds_write_b128 v1, v[{ACC+4*q}:{ACC+4*q+3}] offset:{16*q}')
    emit('    s_waitcnt lgkmcnt(0)')
    emit('    s_barrier')
    emit('    v_and_b32 v1, 15, v0')
    emit('    v_lshrrev_b32 v2, 3, v1')
    emit('    v_lshlrev_b32 v2, 6, v2')
    emit('    v_and_b32 v3, 7, v1')
    emit('    v_bfe_u32 v4, v0, 4, 1')
    emit('    v_lshl_add_u32 v3, v4, 3, v3')
    emit('    v_lshl_add_u32 v2, v3, 2, v2')
    emit('    v_lshrrev_b32 v5, 5, v0')
    emit('    v_lshl_add_u32 v2, v5, 11, v2')
    for r in range(16):
        emit(f'    ds_read_b32 v{16+r}, v2 offset:{r*128}')
    emit('    s_waitcnt lgkmcnt(0)')
    for r in range(1, 16):
        emit(f'    v_add_f32 v16, v16, v{16+r}')
    emit('    v_lshlrev_b32 v1, 2, v0')
    emit(f'    ds_write_b32 v1, v16 offset:{LDS_R2}')
    emit('    s_waitcnt lgkmcnt(0)')
    emit('    s_barrier')
    emit('    v_cmp_gt_u32 vcc, 16, v0')
    emit('    s_and_saveexec_b64 s[82:83], vcc')
    emit('    v_lshlrev_b32 v1, 3, v0')
    for g in range(8):
        emit(f'    ds_read_b64 v[{16+2*g}:{17+2*g}], v1 offset:{LDS_R2+128*g}')
    emit('    s_waitcnt lgkmcnt(0)')
    for g in range(1, 8):
        emit(f'    v_add_f32 v16, v16, v{16+2*g}')
        emit(f'    v_add_f32 v17, v17, v{17+2*g}')
    emit('    v_cvt_pk_bf16_f32 v2, v16, v17')
    emit(f'    v_mov_b32 v3, {NONCE}')
    emit('    v_lshrrev_b32 v4, 3, v0')
    emit('    v_lshlrev_b32 v4, 11, v4')
    emit('    v_and_b32 v5, 7, v0')
    emit('    v_add_u32 v4, v4, v5')
    emit('    v_lshlrev_b32 v4, 3, v4')
    emit('    s_lshl_b32 s52, s97, 6')
    emit(f'    buffer_store_dwordx2 v[2:3], v4, s[44:47], s52 offen offset:{G_Q} sc0 sc1')
    emit('    s_mov_b64 exec, s[82:83]')
    stamp('q published')
    emit('    v_lshlrev_b32 v4, 3, v0')
    emit('    s_lshl_b32 s52, s54, 11')
    poll([f'buffer_load_dwordx2 v[2:3], v4, s[44:47], s52 offen offset:{G_Q} sc0 sc1'], [3])
    for i in range(16):
        r = VB + 4*i
        if i % 4 == 0:
            emit(f'    v_add_u32 v15, {i//4}, v14')
            emit('    v_and_b32 v15, 15, v15')
            emit('    v_lshl_add_u32 v15, v15, 12, v13')
        emit(f'    buffer_load_dwordx4 v[{r}:{r+3}], v15, s[20:23], s56 offen offset:{(i%4)*1024}')
    emit('    s_lshr_b32 s58, s2, 3')
    emit('    s_and_b32 s59, s2, 7')
    emit('    v_lshrrev_b32 v6, 3, v0')
    emit('    v_lshlrev_b32 v6, 10, v6')
    emit('    v_and_b32 v7, 7, v0')
    emit('    v_lshl_add_u32 v6, v7, 4, v6')
    emit('    s_lshl_b32 s52, s58, 17')
    emit('    s_lshl_b32 s53, s59, 7')
    emit('    s_add_u32 s52, s52, s53')
    for i in range(4):
        if 'o' not in NOW: emit(f'    buffer_load_dwordx4 v[{WO+4*i}:{WO+4*i+3}], v6, s[24:27], s52 offen')
        emit('    s_add_u32 s52, s52, 32768')
    emit('    s_cmp_ge_u32 s6, 224')
    emit('    s_cbranch_scc1 L_nogu')
    emit('    s_movk_i32 s3, 3584')
    emit('    v_mul_lo_u32 v6, v0, s3')
    emit('    s_lshl_b32 s52, s6, 4')
    for i in range(2):
        emit(f'    buffer_load_dwordx4 v[{WGU+4*i}:{WGU+4*i+3}], v6, s[28:31], s52 offen')
        emit(f'    buffer_load_dwordx4 v[{WGU+8+4*i}:{WGU+8+4*i+3}], v6, s[32:35], s52 offen')
        emit(f'    s_add_u32 s52, s52, {256*3584}')
    emit('L_nogu:')
    emit('    s_cmp_lt_u32 s2, %d' % (256 if 'd' in NOW else 192))
    emit('    s_cbranch_scc1 L_nowd')
    emit('    v_lshlrev_b32 v6, 10, v0')
    emit('    s_mov_b32 s52, s7')
    emit('    s_lshl_b32 s52, s52, 4')
    for i in range(7):
        emit(f'    buffer_load_dwordx4 v[{WD+4*i}:{WD+4*i+3}], v6, s[36:39], s52 offen')
        emit('    s_add_u32 s52, s52, 262144')
    emit('L_nowd:')
    LDS_Q = 0
    emit('    s_barrier')
    emit('    v_lshlrev_b32 v1, 2, v0')
    emit(f'    ds_write_b32 v1, v2 offset:{LDS_Q}')
    emit('    s_waitcnt lgkmcnt(0)')
    emit('    s_barrier')
    stamp('q arrived')
    emit('    v_lshlrev_b32 v1, 8, v10')
    emit('    v_lshl_add_u32 v1, v11, 4, v1')
    QA = 16
    for kk in range(4):
        emit(f'    ds_read_b128 v[{QA+4*kk}:{QA+4*kk+3}], v1 offset:{LDS_Q+64*kk}')
    emit('    s_waitcnt lgkmcnt(0)')
    emit('    v_cmp_gt_u32 vcc, 4, v10')
    emit('    s_nop 1')
    for i in range(16):
        emit(f'    v_cndmask_b32 v{QA+i}, 0, v{QA+i}, vcc')
    SB = 236
    for i in range(16):
        emit(f'    v_mov_b32 v{SB+i}, 0')
    emit('    s_nop 1')
    for tile in range(4):
        for kk in range(4):
            r = KB + (tile*4+kk)*4
            emit(f'    v_mfma_f32_16x16x32_bf16 v[{SB+4*tile}:{SB+4*tile+3}], v[{QA+4*kk}:{QA+4*kk+3}], v[{r}:{r+3}], v[{SB+4*tile}:{SB+4*tile+3}]')
    emit('    s_nop 7')
    emit('    s_nop 1')
    c = math.log2(math.e) / math.sqrt(128.0)
    cbits = struct.unpack('<I', struct.pack('<f', c))[0]
    emit(f'    s_mov_b32 s52, 0x{cbits:08x}')
    for i in range(16):
        emit(f'    v_mul_f32 v{SB+i}, s52, v{SB+i}')
    MX = KB
    for h in range(4):
        emit(f'    v_max_f32 v{MX+h}, v{SB+h}, v{SB+4+h}')
        emit(f'    v_max3_f32 v{MX+h}, v{MX+h}, v{SB+8+h}, v{SB+12+h}')
    for r in (8, 4, 2, 1):
        emit('    s_nop 1')
        for h in range(4):
            emit(f'    v_max_f32_dpp v{MX+h}, v{MX+h}, v{MX+h} row_ror:{r} row_mask:0xf bank_mask:0xf')
    LDS_P = 1024
    LDS_MX = 5120
    LDS_L = 5184
    LDS_RED = 8192
    emit('    v_lshlrev_b32 v1, 4, v8')
    emit('    v_cmp_eq_u32 vcc, 0, v9')
    emit('    s_and_saveexec_b64 s[82:83], vcc')
    emit(f'    ds_write_b128 v1, v[{MX}:{MX+3}] offset:{LDS_MX}')
    emit('    s_mov_b64 exec, s[82:83]')
    emit('    s_waitcnt lgkmcnt(0)')
    emit('    s_barrier')
    emit('    v_mov_b32 v1, 0')
    for w in range(4):
        emit(f'    ds_read_b128 v[{MX+4+4*w}:{MX+7+4*w}], v1 offset:{LDS_MX+16*w}')
    emit('    s_waitcnt lgkmcnt(0)')
    for h in range(4):
        emit(f'    v_max_f32 v{MX+h}, v{MX+4+h}, v{MX+8+h}')
        emit(f'    v_max3_f32 v{MX+h}, v{MX+h}, v{MX+12+h}, v{MX+16+h}')
    for t in range(4):
        for h in range(4):
            emit(f'    v_sub_f32 v{SB+4*t+h}, v{SB+4*t+h}, v{MX+h}')
            emit(f'    v_exp_f32 v{SB+4*t+h}, v{SB+4*t+h}')
    emit('    s_nop 0')
    LS = MX + 4
    for h in range(4):
        emit(f'    v_add_f32 v{LS+h}, v{SB+h}, v{SB+4+h}')
        emit(f'    v_add_f32 v{LS+4+h}, v{SB+8+h}, v{SB+12+h}')
        emit(f'    v_add_f32 v{LS+h}, v{LS+h}, v{LS+4+h}')
    for r in (8, 4, 2, 1):
        emit('    s_nop 1')
        for h in range(4):
            emit(f'    v_add_f32_dpp v{LS+h}, v{LS+h}, v{LS+h} row_ror:{r} row_mask:0xf bank_mask:0xf')
    emit('    v_lshlrev_b32 v1, 10, v8')
    emit('    v_lshl_add_u32 v1, v9, 4, v1')
    emit('    v_lshlrev_b32 v2, 4, v8')
    emit('    v_cmp_gt_u32 vcc, 16, v9')
    emit('    s_and_saveexec_b64 s[82:83], vcc')
    for t in range(4):
        emit(f'    ds_write_b128 v1, v[{SB+4*t}:{SB+4*t+3}] offset:{LDS_P+256*t}')
    emit('    v_cmp_eq_u32 vcc, 0, v9')
    emit('    s_and_saveexec_b64 s[84:85], vcc')
    emit(f'    ds_write_b128 v2, v[{LS}:{LS+3}] offset:{LDS_L}')
    emit('    s_mov_b64 exec, s[82:83]')
    emit('    s_waitcnt lgkmcnt(0)')
    emit('    s_barrier')
    AB = KB + 16
    for i in range(32):
        emit(f'    v_mov_b32 v{AB+i}, 0')
    emit('    v_lshlrev_b32 v1, 10, v8')
    emit('    v_lshl_add_u32 v1, v11, 4, v1')
    for i in range(16):
        emit(f'    ds_read_b128 v[{SB}:{SB+3}], v1 offset:{LDS_P+64*i}')
        emit(f'    s_waitcnt vmcnt({15-i+4})')
        unpack8(VB + 4*i, 16)
        emit('    s_waitcnt lgkmcnt(0)')
        for h in range(4):
            for j in range(8):
                emit(f'    v_fmac_f32 v{AB+8*h+j}, v{SB+h}, v{16+j}')
    emit('    v_lshl_add_u32 v1, v8, 2, v11')
    emit('    v_lshlrev_b32 v1, 11, v1')
    emit('    v_lshl_add_u32 v1, v10, 5, v1')
    for h in range(4):
        emit(f'    ds_write_b128 v1, v[{AB+8*h}:{AB+8*h+3}] offset:{LDS_RED+512*h}')
        emit(f'    ds_write_b128 v1, v[{AB+8*h+4}:{AB+8*h+7}] offset:{LDS_RED+512*h+16}')
    emit('    s_waitcnt lgkmcnt(0)')
    emit('    s_barrier')
    emit('    v_lshlrev_b32 v1, 3, v0')
    T = 96
    T = 16
    for g in range(16):
        emit(f'    ds_read_b64 v[{T+2*g}:{T+1+2*g}], v1 offset:{LDS_RED+2048*g}')
    emit('    s_waitcnt lgkmcnt(0)')
    for g in range(1, 16):
        emit(f'    v_add_f32 v{T}, v{T}, v{T+2*g}')
        emit(f'    v_add_f32 v{T+1}, v{T+1}, v{T+1+2*g}')
    emit(f'    v_mov_b32 v{T+4}, v{T}')
    emit(f'    v_mov_b32 v{T+5}, {NONCE}')
    emit(f'    v_mov_b32 v{T+6}, v{T+1}')
    emit(f'    v_mov_b32 v{T+7}, {NONCE}')
    emit('    v_lshlrev_b32 v2, 14, v8')
    emit('    v_lshl_add_u32 v2, v9, 4, v2')
    emit('    s_lshl_b32 s52, s54, 16')
    emit('    s_lshl_b32 s53, s55, 10')
    emit('    s_add_u32 s52, s52, s53')
    emit(f'    s_add_u32 s52, s52, {G_PO}')
    emit(f'    buffer_store_dwordx4 v[{T+4}:{T+7}], v2, s[44:47], s52 offen sc0 sc1')
    emit('    v_cmp_gt_u32 vcc, 4, v0')
    emit('    s_and_saveexec_b64 s[82:83], vcc')
    emit('    v_lshlrev_b32 v2, 2, v0')
    for w in range(4):
        emit(f'    ds_read_b32 v{T+8+w}, v2 offset:{LDS_L+16*w}')
    emit('    s_waitcnt lgkmcnt(0)')
    emit(f'    v_add_f32 v{T+8}, v{T+8}, v{T+9}')
    emit(f'    v_add_f32 v{T+10}, v{T+10}, v{T+11}')
    emit(f'    v_add_f32 v{T+13}, v{T+8}, v{T+10}')
    emit(f'    v_mov_b32 v{T+12}, v{MX}')
    for h in range(1, 4):
        emit(f'    v_cmp_eq_u32 vcc, {h}, v0')
        emit('    s_nop 1')
        emit(f'    v_cndmask_b32 v{T+12}, v{T+12}, v{MX+h}, vcc')
    emit(f'    v_mov_b32 v{T+14}, {NONCE}')
    emit(f'    v_mov_b32 v{T+15}, {NONCE}')
    emit('    v_lshlrev_b32 v2, 8, v0')
    emit('    s_lshl_b32 s52, s54, 10')
    emit('    s_lshl_b32 s53, s55, 4')
    emit('    s_add_u32 s52, s52, s53')
    emit(f'    s_add_u32 s52, s52, {G_ML}')
    emit(f'    buffer_store_dwordx4 v[{T+12}:{T+15}], v2, s[44:47], s52 offen sc0 sc1')
    emit('    s_mov_b64 exec, s[82:83]')
    stamp('B published')
    emit('    v_lshrrev_b32 v6, 7, v0')
    emit('    v_and_b32 v7, 127, v0')
    emit('    v_lshlrev_b32 v1, 19, v6')
    emit('    v_lshl_add_u32 v1, v7, 3, v1')
    emit('    s_lshl_b32 s52, s58, 14')
    emit(f'    s_add_u32 s52, s52, {G_PO}')
    emit('    s_add_u32 s53, s52, 4096')
    emit('    s_add_u32 s94, s52, 8192')
    emit('    s_add_u32 s95, s52, 12288')
    emit('    v_lshlrev_b32 v2, 13, v6')
    emit('    s_lshl_b32 s96, s58, 8')
    emit(f'    s_add_u32 s96, s96, {G_ML}')
    PO = 48
    ML = 80
    loads = []
    soffs = ['s52', 's53', 's94', 's95']
    for s in range(16):
        loads.append(f'buffer_load_dwordx2 v[{PO+2*s}:{PO+2*s+1}], v1, s[44:47], {soffs[s//4]} offen offset:{1024*(s%4)} sc0 sc1')
    for s in range(16):
        loads.append(f'buffer_load_dwordx4 v[{ML+4*s}:{ML+4*s+3}], v2, s[44:47], s96 offen offset:{16*s} sc0 sc1')
    poll(loads, [PO+2*s+1 for s in range(16)] + [ML+4*s+2 for s in range(16)])
    stamp('C polled')
    emit(f'    v_max_f32 v3, v{ML}, v{ML+4}')
    for s in range(2, 16):
        emit(f'    v_max_f32 v3, v3, v{ML+4*s}')
    emit('    v_mov_b32 v4, 0')
    emit('    v_mov_b32 v5, 0')
    for s in range(16):
        emit(f'    v_sub_f32 v{ML+4*s}, v{ML+4*s}, v3')
        emit(f'    v_exp_f32 v{ML+4*s}, v{ML+4*s}')
        emit('    s_nop 0')
        emit(f'    v_fmac_f32 v4, v{ML+4*s}, v{ML+4*s+1}')
        emit(f'    v_fmac_f32 v5, v{ML+4*s}, v{PO+2*s}')
    emit('    v_rcp_f32 v4, v4')
    emit('    s_nop 0')
    emit('    v_mul_f32 v5, v5, v4')
    round_bf16(5, 3)
    LDS_O = 16384
    emit('    s_barrier')
    emit('    v_lshlrev_b32 v3, 2, v0')
    emit(f'    ds_write_b32 v3, v5 offset:{LDS_O}')
    emit('    s_waitcnt lgkmcnt(0)')
    emit('    s_barrier')
    for i in range(16):
        emit(f'    v_mov_b32 v{ACC+i}, 0')
    emit('    v_lshrrev_b32 v5, 3, v0')
    emit('    v_lshlrev_b32 v5, 2, v5')
    for i in range(4):
        emit(f'    ds_read_b32 v{24+2*i}, v5 offset:{LDS_O+128*i}')
        emit(f'    ds_read_b32 v{25+2*i}, v5 offset:{LDS_O+512+128*i}')
    emit('    s_waitcnt lgkmcnt(0)')
    for i in range(4):
        unpack8(WO + 4*i, 16)
        for j in range(8):
            emit(f'    v_fmac_f32 v{ACC+j}, v{24+2*i}, v{16+j}')
            emit(f'    v_fmac_f32 v{ACC+8+j}, v{25+2*i}, v{16+j}')
    emit('    v_lshlrev_b32 v1, 6, v0')
    for q in range(4):
        emit(f'    ds_write_b128 v1, v[{ACC+4*q}:{ACC+4*q+3}] offset:{16*q}')
    emit('    s_waitcnt lgkmcnt(0)')
    emit('    s_barrier')
    emit('    v_cmp_gt_u32 vcc, 128, v0')
    emit('    s_and_saveexec_b64 s[82:83], vcc')
    emit('    v_and_b32 v1, 63, v0')
    emit('    v_lshrrev_b32 v2, 3, v1')
    emit('    v_lshlrev_b32 v2, 6, v2')
    emit('    v_and_b32 v3, 7, v1')
    emit('    v_lshrrev_b32 v4, 6, v0')
    emit('    v_lshl_add_u32 v3, v4, 3, v3')
    emit('    v_lshl_add_u32 v2, v3, 2, v2')
    for r in range(32):
        emit(f'    ds_read_b32 v{16+r}, v2 offset:{r*512}')
    emit('    s_waitcnt lgkmcnt(0)')
    for r in range(1, 32):
        emit(f'    v_add_f32 v16, v16, v{16+r}')
    emit(f'    v_mov_b32 v17, {NONCE}')
    emit('    v_lshrrev_b32 v2, 2, v0')
    emit('    v_lshlrev_b32 v2, 10, v2')
    emit('    v_and_b32 v3, 3, v0')
    emit('    v_lshl_add_u32 v2, v3, 3, v2')
    emit('    s_lshl_b32 s52, s59, 15')
    emit('    s_lshl_b32 s53, s58, 5')
    emit('    s_add_u32 s52, s52, s53')
    emit(f'    s_add_u32 s52, s52, {G_HP}')
    emit('    buffer_store_dwordx2 v[16:17], v2, s[44:47], s52 offen sc0 sc1')
    stamp('C published')
    emit('    v_lshlrev_b32 v2, 3, v0')
    emit('    s_lshl_b32 s52, s59, 15')
    emit('    s_lshl_b32 s53, s58, 10')
    emit('    s_add_u32 s52, s52, s53')
    emit(f'    s_add_u32 s52, s52, {G_HP}')
    poll(['buffer_load_dwordx2 v[16:17], v2, s[44:47], s52 offen sc0 sc1'], [17])
    emit('    v_lshlrev_b32 v2, 2, v0')
    emit(f'    ds_write_b32 v2, v16 offset:{LDS_S}')
    emit('    s_mov_b64 exec, s[82:83]')
    emit('    s_waitcnt lgkmcnt(0)')
    emit('    s_barrier')
    emit('    v_cmp_gt_u32 vcc, 4, v0')
    emit('    s_and_saveexec_b64 s[82:83], vcc')
    emit('    v_lshlrev_b32 v2, 2, v0')
    for r in range(32):
        emit(f'    ds_read_b32 v{16+r}, v2 offset:{LDS_S+16*r}')
    emit('    s_lshl_b32 s52, s58, 2')
    emit('    s_lshr_b32 s53, s52, 6')
    emit('    s_and_b32 s52, s52, 63')
    emit('    s_lshl_b32 s53, s53, 9')
    emit('    s_add_u32 s52, s52, s53')
    emit('    s_lshl_b32 s53, s59, 6')
    emit('    s_add_u32 s52, s52, s53')
    emit('    v_add_u32 v3, s52, v0')
    emit('    v_lshlrev_b32 v4, 1, v3')
    emit('    buffer_load_ushort v5, v4, s[8:11], 0 offen')
    emit('    s_waitcnt lgkmcnt(0)')
    for r in range(1, 32):
        emit(f'    v_add_f32 v16, v16, v{16+r}')
    round_bf16(16, 6)
    emit('    s_waitcnt vmcnt(0)')
    emit('    v_lshlrev_b32 v5, 16, v5')
    emit('    v_add_f32 v16, v16, v5')
    round_bf16(16, 6)
    emit(f'    v_mov_b32 v17, {NONCE}')
    emit('    v_lshlrev_b32 v4, 3, v3')
    emit(f'    s_mov_b32 s52, {G_H}')
    emit('    buffer_store_dwordx2 v[16:17], v4, s[44:47], s52 offen sc0 sc1')
    emit('    s_mov_b64 exec, s[82:83]')
    stamp('R published')
    emit('    v_lshlrev_b32 v2, 5, v0')
    emit(f'    s_mov_b32 s52, {G_H}')
    poll(['buffer_load_dwordx4 v[16:19], v2, s[44:47], s52 offen sc0 sc1',
          'buffer_load_dwordx4 v[20:23], v2, s[44:47], s52 offen offset:16 sc0 sc1'], [17, 19, 21, 23])
    stamp('D polled')
    HV = 48
    emit(f'    v_mov_b32 v{HV}, v16')
    emit(f'    v_mov_b32 v{HV+1}, v18')
    emit(f'    v_mov_b32 v{HV+2}, v20')
    emit(f'    v_mov_b32 v{HV+3}, v22')
    LDS_H = 24576
    emit('    v_lshlrev_b32 v1, 4, v0')
    emit(f'    ds_write_b128 v1, v[{HV}:{HV+3}] offset:{LDS_H}')
    emit('    s_cmp_ge_u32 s6, 224')
    emit('    s_cbranch_scc1 L_skipD')
    ln_rows(HV, 20, LDS_S + 512)
    emit('    v_lshlrev_b32 v1, 4, v0')
    emit(f'    ds_write_b128 v1, v[{HV}:{HV+3}] offset:{LDS_XN}')
    emit('    s_waitcnt lgkmcnt(0)')
    emit('    s_barrier')
    GA = 64
    for i in range(32):
        emit(f'    v_mov_b32 v{GA+i}, 0')
    emit('    v_lshlrev_b32 v5, 2, v0')
    for i in range(2):
        emit(f'    ds_read_b32 v{52+2*i}, v5 offset:{LDS_XN+1024*i}')
        emit(f'    ds_read_b32 v{53+2*i}, v5 offset:{LDS_XN+2048+1024*i}')
    emit('    s_waitcnt lgkmcnt(0)')
    for i in range(2):
        unpack8(WGU + 4*i, 16)
        unpack8(WGU + 8 + 4*i, 24)
        for j in range(8):
            emit(f'    v_fmac_f32 v{GA+j}, v{52+2*i}, v{16+j}')
            emit(f'    v_fmac_f32 v{GA+8+j}, v{53+2*i}, v{16+j}')
            emit(f'    v_fmac_f32 v{GA+16+j}, v{52+2*i}, v{24+j}')
            emit(f'    v_fmac_f32 v{GA+24+j}, v{53+2*i}, v{24+j}')
    LDS_D = 28672
    emit('    v_lshlrev_b32 v1, 7, v0')
    for q in range(8):
        emit(f'    ds_write_b128 v1, v[{GA+4*q}:{GA+4*q+3}] offset:{LDS_D+16*q}')
    emit('    s_waitcnt lgkmcnt(0)')
    emit('    s_barrier')
    emit('    v_and_b32 v1, 31, v0')
    emit('    v_lshlrev_b32 v1, 2, v1')
    emit('    v_lshrrev_b32 v2, 5, v0')
    emit('    v_lshl_add_u32 v1, v2, 12, v1')
    for r in range(32):
        emit(f'    ds_read_b32 v{16+r}, v1 offset:{LDS_D+128*r}')
    emit('    s_waitcnt lgkmcnt(0)')
    for r in range(1, 32):
        emit(f'    v_add_f32 v16, v16, v{16+r}')
    emit('    v_lshlrev_b32 v1, 2, v0')
    emit(f'    ds_write_b32 v1, v16 offset:{LDS_R2}')
    emit('    s_waitcnt lgkmcnt(0)')
    emit('    s_barrier')
    emit('    v_cmp_gt_u32 vcc, 8, v0')
    emit('    s_and_saveexec_b64 s[82:83], vcc')
    emit('    v_lshlrev_b32 v1, 2, v0')
    for g in range(8):
        for q in range(4):
            emit(f'    ds_read_b32 v{16+4*g+q}, v1 offset:{LDS_R2+128*g+32*q}')
    emit('    s_waitcnt lgkmcnt(0)')
    for g in range(1, 8):
        for q in range(4):
            emit(f'    v_add_f32 v{16+q}, v{16+q}, v{16+4*g+q}')
    for q in range(4):
        round_bf16(16 + q, 20)
    for b in range(2):
        emit(f'    v_mul_f32 v{20+b}, 0xbfb8aa3b, v{16+b}')
        emit(f'    v_exp_f32 v{20+b}, v{20+b}')
        emit('    s_nop 0')
        emit(f'    v_add_f32 v{20+b}, 1.0, v{20+b}')
        emit(f'    v_rcp_f32 v{20+b}, v{20+b}')
        emit('    s_nop 0')
        round_bf16(20 + b, 22)
        emit(f'    v_mul_f32 v{20+b}, v{20+b}, v{18+b}')
    emit('    v_cvt_pk_bf16_f32 v2, v20, v21')
    emit(f'    v_mov_b32 v3, {NONCE}')
    emit('    v_lshlrev_b32 v1, 3, v0')
    emit('    s_lshl_b32 s52, s6, 6')
    emit(f'    s_add_u32 s52, s52, {G_HH}')
    emit('    buffer_store_dwordx2 v[2:3], v1, s[44:47], s52 offen sc0 sc1')
    emit('    s_mov_b64 exec, s[82:83]')
    emit('L_skipD:')
    stamp('D published')
    emit('    s_cmp_lt_u32 s2, 192')
    emit('    s_cbranch_scc1 L_done')
    emit('    v_lshlrev_b32 v2, 3, v0')
    emit(f'    s_mov_b32 s52, {G_HH}')
    emit(f'    s_mov_b32 s53, {G_HH+4096}')
    emit(f'    s_mov_b32 s94, {G_HH+8192}')
    emit(f'    s_mov_b32 s95, {G_HH+12288}')
    HHR = 48
    loads = []
    for i in range(7):
        so = ['s52', 's53', 's94', 's95'][i // 2]
        loads.append(f'buffer_load_dwordx2 v[{HHR+2*i}:{HHR+2*i+1}], v2, s[44:47], {so} offen offset:{2048*(i%2)} sc0 sc1')
    poll(loads, [HHR+2*i+1 for i in range(7)])
    stamp('E polled')
    for i in range(16):
        emit(f'    v_mov_b32 v{ACC+i}, 0')
    for i in range(7):
        emit(f'    v_lshlrev_b32 v24, 16, v{HHR+2*i}')
        emit(f'    v_and_b32 v25, 0xffff0000, v{HHR+2*i}')
        unpack8(WD + 4*i, 16)
        for j in range(8):
            emit(f'    v_fmac_f32 v{ACC+j}, v24, v{16+j}')
            emit(f'    v_fmac_f32 v{ACC+8+j}, v25, v{16+j}')
    emit('    s_barrier')
    emit('    v_lshlrev_b32 v1, 6, v0')
    for q in range(4):
        emit(f'    ds_write_b128 v1, v[{ACC+4*q}:{ACC+4*q+3}] offset:{16*q}')
    emit('    s_waitcnt lgkmcnt(0)')
    emit('    s_barrier')
    emit('    v_lshrrev_b32 v2, 4, v0')
    emit('    v_lshlrev_b32 v2, 10, v2')
    emit('    v_and_b32 v3, 15, v0')
    emit('    v_lshl_add_u32 v2, v3, 2, v2')
    for r in range(16):
        emit(f'    ds_read_b32 v{16+r}, v2 offset:{64*r}')
    emit('    s_waitcnt lgkmcnt(0)')
    for r in range(1, 16):
        emit(f'    v_add_f32 v16, v16, v{16+r}')
    emit('    v_lshlrev_b32 v1, 2, v0')
    emit(f'    ds_write_b32 v1, v16 offset:{LDS_R2}')
    emit('    s_waitcnt lgkmcnt(0)')
    emit('    s_barrier')
    emit('    v_cmp_gt_u32 vcc, 16, v0')
    emit('    s_and_saveexec_b64 s[82:83], vcc')
    for r in range(16):
        emit(f'    ds_read_b32 v{16+r}, v1 offset:{LDS_R2+64*r}')
    emit('    v_lshrrev_b32 v4, 3, v0')
    emit('    v_and_b32 v3, 7, v0')
    emit('    v_lshl_add_u32 v5, v4, 9, v3')
    emit('    s_mov_b32 s52, s7')
    emit('    s_lshl_b32 s52, s52, 3')
    emit('    v_add_u32 v5, s52, v5')
    emit('    v_lshlrev_b32 v6, 2, v5')
    emit(f'    ds_read_b32 v7, v6 offset:{LDS_H}')
    emit('    s_waitcnt lgkmcnt(0)')
    for r in range(1, 16):
        emit(f'    v_add_f32 v16, v16, v{16+r}')
    round_bf16(16, 8)
    emit('    v_add_f32 v16, v16, v7')
    emit('    v_cvt_pk_bf16_f32 v16, v16, v16')
    emit('    v_lshlrev_b32 v6, 1, v5')
    emit('    buffer_store_short v16, v6, s[40:43], 0 offen')
    stamp('end')
    emit('L_done:')
    emit('    s_endpgm')
    emit('.section .rodata,"a"')
    emit('.p2align 6')
    emit(f'.amdhsa_kernel {kn}')
    emit('  .amdhsa_next_free_vgpr 256')
    emit('  .amdhsa_next_free_sgpr 102')
    emit('  .amdhsa_accum_offset 256')
    emit('  .amdhsa_group_segment_fixed_size 0')
    emit('  .amdhsa_kernarg_size 96')
    emit('  .amdhsa_user_sgpr_count 2')
    emit('  .amdhsa_user_sgpr_kernarg_segment_ptr 1')
    emit('  .amdhsa_system_sgpr_workgroup_id_x 1')
    emit('.end_amdhsa_kernel')

gen()
hdr = HEADER + '; @launch grid=(256,1,1) block=(256,1,1) lds=65536\n'
dst = sys.argv[1] if len(sys.argv) > 1 else f'cdna_kernels/{NAME}.s'
open(dst, 'w').write(hdr + '\n'.join(out) + '\n')
print('ok', len(out))
```
